```python
import torch

def _softmax(x, axis=-1):
    return torch.softmax(x, dim=axis)
def _gelu(x):
    return torch.nn.functional.gelu(x, approximate="tanh")
def _silu(x):
    return torch.nn.functional.silu(x)
def _sigmoid(x):
    return torch.sigmoid(x)
def _layernorm(x, axis=-1, eps=1e-5):
    m = x.mean(dim=axis, keepdim=True)
    v = x.var(dim=axis, keepdim=True, unbiased=False)
    return (x - m) / torch.sqrt(v + eps)
def _scatter_add(tgt, idx, src, axis=0):
    return tgt.clone().index_add_(axis, idx, src)
def _segment_sum(src, seg, n):
    out = torch.zeros((n,) + src.shape[1:], dtype=src.dtype)
    return out.index_add_(0, seg, src)
def _pad(x, pw):
    flat = tuple(v for pair in reversed(pw) for v in pair)
    return torch.nn.functional.pad(x, flat)

kernel_name = 'standalone__depthwise_separable__vision'

def setup_inputs():

    _w = (lambda a: (lambda t: t.to(torch.bfloat16) if t.is_floating_point() else t)(torch.as_tensor(a)))
    H = W = 384
    C = 192
    k = 1
    return {
        "x": _w((lambda *s: torch.randn(*s, dtype=torch.bfloat16) * 0.05)(1, H, W, C)),
        "dw": _w((lambda *s: torch.randn(*s, dtype=torch.bfloat16) * 0.05)(k, k, C)),
        "pw": _w((lambda *s: torch.randn(*s, dtype=torch.bfloat16) * 0.05)(C, C)),
    }

def reference(x, dw, pw):
    B, H, W, C = x.shape
    k = dw.shape[0]
    pad = k // 2
    xp = _pad(x, ((0,0),(pad,pad),(pad,pad),(0,0)))
    out = torch.zeros_like(x)
    for i in range(k):
        for j in range(k):
            out = out + xp[:, i:i+H, j:j+W, :] * dw[i, j][None, None, None, :]
    return torch.einsum('bhwc,cd->bhwd', out, pw)
```

```python
import sys, argparse

NAME = "standalone__depthwise_separable__vision"
HDR = """; Kernarg layout for this problem (48 bytes, ptrs only, base s[0:1]):
;   offset  40: d_ws      268435456 bytes workspace
"""
XBYTES = 147456 * 384
TILE = 6144
SB = 49152
NT = 9


class Opt:
    S = 3; order = "inter"; ld = "nt"; st = "sc0 sc1"; wld = ""; stamp = False; lstamp = False
    numa = "probe"; n0 = 4; G = 2; guess = 0; tlb = True; thr = -1; xfirst = False; rounds = 3; win = -1; swin = -1; d0 = 3; pwin = -1


def gen(p):
    S = p.S
    XB = 73728
    LDS = XB + 4 * S * TILE
    assert LDS <= 163840
    LG = {1: 0, 2: 1, 4: 2, 8: 3}[p.G]
    NG = -(-27 // p.G)
    assert NG <= 14
    stamp = p.stamp
    o = []
    names = []
    vm = []

    def e(x):
        o.append(x)

    def st(label):
        if stamp:
            k = len(names); names.append(label)
            e(f"  s_memrealtime s[{76+2*k}:{77+2*k}]")

    def vop(txt, tag):
        e(txt); vm.append(tag)

    def vwait(tag):
        idx = len(vm) - 1 - vm[::-1].index(tag)
        n = len(vm) - 1 - idx
        e(f"  s_waitcnt vmcnt({min(n, 63)})")

    e(HDR + f"; @launch grid=(256,1,1) block=(256,1,1) lds={LDS}")
    e('.amdgcn_target "amdgcn-amd-amdhsa--gfx950"')
    e(".text")
    e(f".globl {NAME}_kernel")
    e(".p2align 8")
    e(f".type {NAME}_kernel,@function")
    e(f"{NAME}_kernel:")
    e("  s_cmp_ge_u32 s2, 256")
    e("  s_cbranch_scc1 L_end")
    st("start")
    e("  s_load_dwordx8 s[28:35], s[0:1], 0")
    e("  s_load_dwordx4 s[68:71], s[0:1], 32     ; dbg, ws")
    e("  v_lshrrev_b32 v1, 6, v0")
    e("  v_and_b32 v0, 63, v0                    ; lane")
    e("  v_readfirstlane_b32 s20, v1")
    e("  v_and_b32 v2, 15, v0                    ; j")
    e("  v_lshrrev_b32 v3, 4, v0                 ; g")
    e("  s_movk_i32 s44, 0x180")
    e("  v_mul_u32_u24 v5, 0xc00, v3")
    e("  v_lshl_add_u32 v214, v2, 4, v5          ; pw x4 offset: 8g rows + 16 j")
    e("  v_lshl_add_u32 v215, v2, 3, v5")
    e("  v_add_u32 v215, 0x100, v215")
    e("  v_lshlrev_b32 v216, 4, v3")
    if stamp:
        e("  v_mov_b32 v219, 0")
        e("  s_mov_b32 s73, 0")
    e(f"  s_mul_i32 s64, s20, {32*384}            ; pw offset unit XY")
    e("  s_lshl_b32 s65, s20, 6                  ; dw offset unit XY")
    e("  s_lshr_b32 s27, s20, 1")
    e("  s_add_u32 s27, s27, 4")
    e("  s_and_b32 s45, s20, 1")
    e("  s_lshl_b32 s66, s27, 3")
    e("  s_add_u32 s66, s66, s45")
    e("  s_lshl_b32 s67, s66, 3")
    e(f"  s_mul_i32 s66, s66, {4*384}")
    e("  s_lshr_b32 s47, s2, 3")
    e("  s_lshl_b32 s46, s47, 2")
    e("  s_and_b32 s27, s2, 3")
    e("  s_add_u32 s46, s46, s27                 ; q")
    if p.order == "rot":
        e("  s_mul_i32 s21, s46, 57")
        e("  s_lshr_b32 s21, s21, 9")
        e("  s_mul_i32 s21, s21, 9")
        e("  s_sub_u32 s21, s46, s21                 ; q mod 9")
        e("  s_lshl_b32 s21, s21, 7")
        e("  s_add_u32 s21, s21, s46")
        e(f"  s_mul_i32 s21, s21, {SB}")
        STEP = 128 * SB
    elif p.order == "rot3":
        e("  s_mul_i32 s21, s46, 171")
        e("  s_lshr_b32 s21, s21, 9")
        e("  s_mul_i32 s21, s21, 3")
        e("  s_sub_u32 s21, s46, s21                 ; q mod 3")
        e("  s_mul_i32 s21, s21, 384")
        e("  s_add_u32 s21, s21, s46")
        e(f"  s_mul_i32 s21, s21, {SB}")
        STEP = 128 * SB
    elif p.order == "inter":
        e(f"  s_mul_i32 s21, s46, {SB}")
        STEP = 128 * SB
    elif p.order == "chunk":
        e(f"  s_mul_i32 s21, s46, {SB*9}")
        STEP = SB
    wrap = p.order in ("rot", "rot3")
    e("  s_lshr_b32 s38, s2, 2")
    e("  s_xor_b32 s38, s38, s46")
    e("  s_and_b32 s38, s38, 1")
    e("  s_mov_b32 s39, 0")
    e("  s_mov_b32 s40, 0")
    e("  s_mov_b32 s42, 0")
    e(f"  s_mul_i32 s25, s20, {S*TILE}")
    e(f"  s_add_u32 s25, s25, {XB}")
    e("  s_mov_b32 s26, 0xffff0000")
    e("  s_mov_b32 s7, 0x20000")
    e("  s_mov_b32 s11, 0x20000")
    e("  s_mov_b32 s15, 0x20000")
    e("  s_mov_b32 s19, 0x20000")
    e(f"  s_mov_b32 s6, {XBYTES}")
    e(f"  s_mov_b32 s10, {XBYTES}")
    e(f"  s_mov_b32 s14, {192*384}")
    e("  s_mov_b32 s18, 384")
    probe = p.numa == "probe"
    if probe:
        e("  s_and_b32 s72, s47, 3")
        e("  s_lshr_b32 s27, s47, 3")
        e("  s_lshl_b32 s27, s27, 2")
        e("  s_add_u32 s72, s72, s27")
        e("  s_lshl_b32 s72, s72, 1")
        e("  s_and_b32 s27, s2, 1")
        e("  s_add_u32 s72, s72, s27")
        e("  s_and_b32 s27, s2, 0x26")
        e("  s_or_b32 s27, s27, s20")
        e("  s_cmp_lg_u32 s27, 0")
        e(f"  s_cselect_b32 s72, {NG}, s72")

    def rowmap(src, dst):
        e(f"  v_add_u32 v6, 43, v{src}")
        e(f"  v_add_u32 v7, 22, v{src}")
        e("  v_lshrrev_b32 v6, 6, v6")
        e("  v_lshrrev_b32 v7, 6, v7")
        e(f"  v_mad_u32_u24 v6, v6, 22, v{src}")
        e(f"  v_mad_u32_u24 v{dst}, v7, 21, v6")

    def dma_tables():
        e("  s_movk_i32 s27, 2731")
        e("  s_lshl_b32 s45, s20, 4                  ; 16 w")
        for i in range(6):
            if i:
                e(f"  v_add_u32 v4, {64*i}, v0")
                q = 4
            else:
                q = 0
            e(f"  v_mul_u32_u24 v5, s27, v{q}")
            e("  v_lshrrev_b32 v8, 16, v5               ; m")
            e("  v_bfe_u32 v5, v5, 17, 3                ; (m>>1)&7")
            e("  v_mul_u32_u24 v9, 24, v8")
            e(f"  v_sub_u32 v9, v{q}, v9")
            e("  v_xor_b32 v9, v9, v5")
            e(f"  v_lshlrev_b32 v{16+i}, 4, v9")
            e("  v_add_u32 v8, s45, v8")
            rowmap(8, 10 + i)

    def other_tables():
        e("  s_lshl_b32 s45, s20, 4")
        for r in range(4):
            e(f"  v_lshl_add_u32 v8, v3, 2, {r}")
            e("  v_add_u32 v8, s45, v8")
            rowmap(8, 22 + r)
        e("  v_lshlrev_b32 v26, 4, v2")
        e("  v_lshlrev_b32 v27, 3, v2")
        e("  v_sub_u32 v27, 0x100, v27               ; 256 - 8 j")
        e("  v_lshrrev_b32 v4, 1, v2")
        e("  v_xor_b32 v4, v4, v3                    ; g ^ f")
        e("  v_lshlrev_b32 v4, 4, v4")
        e("  v_mad_u32_u24 v28, v2, s44, v4")
        e("  v_xor_b32 v4, 64, v4")
        e("  v_mad_u32_u24 v29, v2, s44, v4")
        e("  v_lshlrev_b32 v217, 4, v0               ; lane*16")

    def side_calc(j):
        return [f"  s_add_u32 s43, s22, {SB//2}",
                "  s_lshr_b32 s43, s43, 21                 ; page",
                f"  s_lshr_b32 s45, s43, {LG}",
                "  s_lshr_b32 s45, s40, s45",
                "  s_and_b32 s43, s43, s39",
                "  s_xor_b32 s43, s43, s45",
                "  s_xor_b32 s43, s43, s38",
                "  s_and_b32 s43, s43, 1",
                f"  s_lshl_b32 s45, s43, {j}",
                "  s_or_b32 s42, s42, s45",
                "  s_mul_i32 s43, s43, 127"]

    peel = [False]

    def dma_one(i, slot, tag):
        e(f"  s_mov_b32 m0, {slot}" if i == 0 else "  s_add_u32 m0, m0, 0x400")
        e(f"  v_xor_b32 v56, s43, v{10+i}")
        e(f"  v_mad_u32_u24 v56, v56, s44, v{16+i}")
        if peel[0] and p.pwin >= 0: e(f"  s_waitcnt vmcnt({p.pwin})")
        vop(f"  buffer_load_dwordx4 v56, s[4:7], s22 offen {p.ld} lds", tag)

    def adv(reg):
        L = [f"  s_add_u32 {reg}, {reg}, {STEP}"]
        if wrap:
            L.append(f"  s_sub_u32 s45, {reg}, {XBYTES}")
            L.append(f"  s_cselect_b32 {reg}, {reg}, s45")
        return L

    def dma_items(n):
        def first():
            if n:
                for l in adv("s22"): e(l)
                e(f"  s_add_u32 s24, s24, {TILE}")
            for l in side_calc(str(n)): e(l)
            dma_one(0, "s24", f"L{n}")
        return [first] + [(lambda i=i: dma_one(i, "s24", f"L{n}")) for i in range(1, 6)]

    if p.xfirst:
        dma_tables()
    e("  s_mov_b32 s22, s21")
    e("  s_mov_b32 s24, s25")
    e("  s_waitcnt lgkmcnt(0)")
    st("kernarg")
    e("  s_mov_b32 s12, s32")
    e("  s_and_b32 s13, s33, 0xffff")
    e("  s_mov_b32 s16, s30")
    e("  s_and_b32 s17, s31, 0xffff")
    e("  s_mov_b32 s4, s28")
    e("  s_and_b32 s5, s29, 0xffff")
    e("  s_mov_b32 s8, s34")
    e("  s_and_b32 s9, s35, 0xffff")
    e("  s_mov_b64 s[36:37], s[68:69]")
    if p.numa == "ws":
        e("  s_add_u32 s62, s70, 0x100000")
        e("  s_addc_u32 s63, s71, 0")
    SENT = 0x7fc17fc1

    def probe_issue(rnd):
        off = 0x4000 * (5 * rnd + 1) + 0x1100 * (rnd & 1) + 0x300
        a, b = (0, 8192) if (rnd & 1) == 0 else (8192, 0)
        e(f"  s_mov_b32 s49, 0x{SENT:x}")
        e(f"  s_load_dword s48, s[62:63], {hex(off + a)}")
        e(f"  s_load_dword s49, s[62:63], {hex(off + b)}")

    def probe_eval(rnd):
        e("  s_waitcnt lgkmcnt(1)")
        e(f"  s_cmp_lg_u32 s49, 0x{SENT:x}" if (rnd & 1) == 0 else f"  s_cmp_eq_u32 s49, 0x{SENT:x}")
        e("  s_addc_u32 s74, s74, 0")
        e("  s_waitcnt lgkmcnt(0)")

    if probe:
        e(f"  s_cmp_ge_u32 s72, {NG}")
        e("  s_cbranch_scc1 L_noprobe1")
        e(f"  s_lshl_b32 s27, s72, {21+LG}")
        e("  s_add_u32 s27, s27, 0x100000")
        e("  s_add_u32 s62, s28, s27")
        e("  s_addc_u32 s63, s29, 0")
        e("  s_mov_b32 s74, 0")
        e("  s_load_dword s48, s[62:63], 0x0")
        e("L_noprobe1:")
    if p.tlb:
        e("  s_lshl_b32 s27, s47, 2")
        e("  s_add_u32 s27, s27, s20")
        e("  s_sub_u32 s27, s27, 64")
        e("  s_cmp_ge_u32 s27, 54")
        e("  s_cbranch_scc1 L_notlb")
        e("  s_cmp_ge_u32 s27, 27")
        e("  s_cselect_b64 s[50:51], s[34:35], s[28:29]")
        e("  s_cselect_b32 s45, 27, 0")
        e("  s_sub_u32 s27, s27, s45")
        e("  s_lshl_b32 s27, s27, 21")
        e("  s_add_u32 s50, s50, s27")
        e("  s_addc_u32 s51, s51, 0")
        e("  s_load_dword s52, s[50:51], 0x0")
        e("L_notlb:")
    XY = 72; Z = 124; DWF = 150; T = 158; F = 166
    pend = []
    if p.xfirst:
        for f in dma_items(0): f()
    mark = len(o)
    if not p.xfirst:
        dma_tables()
    other_tables()
    tabs = o[mark:]
    del o[mark:]
    vop(f"  buffer_load_dwordx4 v[{XY+48}:{XY+51}], v216, s[16:19], s65 offen", "dwXY")
    per = -(-len(tabs) // 15)
    for ee in range(8):
        vop(f"  buffer_load_dwordx4 v[{XY+4*ee}:{XY+4*ee+3}], v214, s[12:15], s64 offen offset:{384*ee} {p.wld}", f"XY{ee}")
        if ee:
            for l in tabs[:per]: e(l)
            del tabs[:per]
        vop(f"  buffer_load_dwordx2 v[{XY+32+2*ee}:{XY+32+2*ee+1}], v215, s[12:15], s64 offen offset:{384*ee} {p.wld}", f"XY{ee}")
        for l in tabs[:per]: e(l)
        del tabs[:per]
    assert not tabs
    if not probe: st("xyissued")
    if probe:
        e(f"  s_cmp_ge_u32 s72, {NG}")
        e("  s_cbranch_scc1 L_noprobe2")
        e("  s_waitcnt lgkmcnt(0)")
        for rnd in range(p.rounds):
            if rnd == 2:
                e("  s_cmp_lg_u32 s74, 1")
                e("  s_cbranch_scc1 L_probe_done")
            probe_issue(rnd)
            probe_eval(rnd)
        e("L_probe_done:")
        e(f"  s_cmp_ge_u32 s74, {2 if p.rounds > 1 else 1}")
        e("  s_cselect_b32 s27, 1, 0")
        e("  s_getreg_b32 s45, hwreg(HW_REG_XCC_ID, 0, 3)")
        e("  s_lshr_b32 s43, s45, 2")
        e("  s_xor_b32 s27, s27, s43                 ; h (the probed page is even)")
        e("  s_lshl_b32 s27, s27, s72")
        e("  s_lshl_b32 s45, s45, 16")
        e("  s_cmp_eq_u32 s72, 0")
        e("  s_cselect_b32 s45, s45, 0")
        e("  s_or_b32 s27, s27, s45")
        e("  s_or_b32 s48, s27, 0x100000")
        e("  s_atomic_add s48, s[36:37], 0x0")
        if stamp:
            e("  s_or_b32 s74, s74, 0x10000")
            e("  v_writelane_b32 v219, s74, 0")
        e("L_noprobe2:")
    if probe: st("xyissued")
    st("probe")

    def zload(k):
        if k == 0:
            vop(f"  buffer_load_dwordx2 v[{Z+24}:{Z+25}], v216, s[16:19], s67 offen", "dwZ")
        else:
            ee = (k - 1) >> 1
            if (k - 1) & 1 == 0:
                vop(f"  buffer_load_dwordx4 v[{Z+4*ee}:{Z+4*ee+3}], v214, s[12:15], s66 offen offset:{384*ee} {p.wld}", f"Z{ee}")
            else:
                vop(f"  buffer_load_dwordx2 v[{Z+16+2*ee}:{Z+16+2*ee+1}], v215, s[12:15], s66 offen offset:{384*ee} {p.wld}", f"Z{ee}")
    pend += [(lambda k=k: zload(k)) for k in range(9)]
    nxt = 1 if p.xfirst else 0
    npro = min(S, 3) if p.xfirst else min(S, 2)
    for n in range(nxt, npro):
        pend += dma_items(n)

    def prep_unit(base, nep, dwbase, pre, wr, share):
        nrow = 2 * nep
        groups = 6 * nep
        k = 0
        done = 0
        for ep in range(nep):
            vwait(f"{pre}{2*ep+1}")
            if pre == "XY" and ep == 0:
                st("w0")
            e(f"  v_lshlrev_b32 v{DWF+2*ep}, 16, v{dwbase+ep}")
            e(f"  v_and_b32 v{DWF+2*ep+1}, s26, v{dwbase+ep}")
            for cp in range(6):
                if cp < 4:
                    i0 = base + 4 * (2 * ep) + cp
                    i1 = base + 4 * (2 * ep + 1) + cp
                else:
                    i0 = base + 4 * nrow + 2 * (2 * ep) + (cp - 4)
                    i1 = base + 4 * nrow + 2 * (2 * ep + 1) + (cp - 4)
                t = T + 4 * (k & 1)
                k += 1
                e(f"  v_lshlrev_b32 v{t}, 16, v{i0}")
                e(f"  v_lshlrev_b32 v{t+1}, 16, v{i1}")
                e(f"  v_and_b32 v{t+2}, s26, v{i0}")
                e(f"  v_and_b32 v{t+3}, s26, v{i1}")
                e(f"  v_pk_mul_f32 v[{t}:{t+1}], v[{t}:{t+1}], v[{DWF+2*ep}:{DWF+2*ep+1}]")
                e(f"  v_pk_mul_f32 v[{t+2}:{t+3}], v[{t+2}:{t+3}], v[{DWF+2*ep}:{DWF+2*ep+1}]")
                e(f"  v_cvt_pk_bf16_f32 v{F+4*(2*cp)+ep}, v{t}, v{t+1}")
                e(f"  v_cvt_pk_bf16_f32 v{F+4*(2*cp+1)+ep}, v{t+2}, v{t+3}")
                if ep == nep - 1:
                    wr(2 * cp); wr(2 * cp + 1)
                while done * groups < share * k and pend:
                    pend.pop(0)(); done += 1

    e(f"  s_mul_i32 s27, s20, {12*1024}")
    e("  v_add_u32 v218, s27, v217")
    share = min(len(pend), 15)
    prep_unit(XY, 4, XY + 48, "XY", lambda tt: e(f"  ds_write_b128 v218, v[{F+4*tt}:{F+4*tt+3}] offset:{tt*1024}"), share)
    st("prep0")
    e("  s_lshr_b32 s27, s20, 1")
    e("  s_add_u32 s27, s27, 4")
    e(f"  s_mul_i32 s27, s27, {12*1024}")
    e("  s_and_b32 s53, s20, 1")
    e("  s_lshl_b32 s53, s53, 3")
    e("  s_add_u32 s27, s27, s53")
    e("  v_add_u32 v218, s27, v217")
    prep_unit(Z, 2, Z + 24, "Z", lambda tt: e(f"  ds_write_b64 v218, v[{F+4*tt}:{F+4*tt+1}] offset:{tt*1024}"), len(pend))
    assert not pend
    e("  v_add_u32 v30, s25, v28")
    e("  v_add_u32 v31, s25, v29")
    e("  v_add_u32 v218, 0x10000, v217")
    e(f"  s_add_u32 s41, s25, {S*TILE}")
    e("  s_waitcnt lgkmcnt(0)")
    st("prebar")
    e("  s_barrier")
    st("postbar")

    def wreg(s, t):
        f = s * 12 + t
        if f < 64:
            return f"a[{4*f}:{4*f+3}]"
        return f"v[{224+4*(f-64)}:{224+4*(f-64)+3}]"

    def wread(s, t):
        f = s * 12 + t
        if f < 64:
            e(f"  ds_read_b128 {wreg(s,t)}, v217 offset:{f*1024}")
        else:
            e(f"  ds_read_b128 {wreg(s,t)}, v218 offset:{(f-64)*1024}")

    XF = 32; SO = 62; ACC = 72; P = 120; Q = 136

    def lst(k):
        if stamp and p.lstamp:
            e("  s_memrealtime s[74:75]")
            e(f"  s_add_u32 m0, s23, {16*k}")
            e("  s_waitcnt lgkmcnt(0)")
            e("  v_writelane_b32 v144, s74, m0")

    def xread(s):
        e(f"  ds_read_b128 v[{XF+4*s}:{XF+4*s+3}], v{30+(s&1)} offset:{128*(s>>1)}")

    def mfma(t, s):
        c = "0" if s == 0 else f"v[{ACC+4*t}:{ACC+4*t+3}]"
        e(f"  v_mfma_f32_16x16x32_bf16 v[{ACC+4*t}:{ACC+4*t+3}], v[{XF+4*s}:{XF+4*s+3}], {wreg(s,t)}, {c}")

    def cvt(tp, r):
        d = P + 4 * r + tp // 2 if tp < 8 else Q + 2 * r + (tp - 8) // 2
        e(f"  v_cvt_pk_bf16_f32 v{d}, v{ACC+4*tp+r}, v{ACC+4*(tp+1)+r}")

    def x2store(r, tag):
        vop(f"  buffer_store_dwordx2 v[{Q+2*r}:{Q+2*r+1}], v{SO+4+r}, s[8:11], s21 offen {p.st}", tag)

    def x4store(r, tag):
        vop(f"  buffer_store_dwordx4 v[{P+4*r}:{P+4*r+3}], v{SO+r}, s[8:11], s21 offen {p.st}", tag)

    def store_offsets(r):
        e(f"  v_xor_b32 v57, s54, v{22+r}")
        e(f"  v_mad_u32_u24 v{SO+r}, v57, s44, v26")
        e(f"  v_add_u32 v{SO+4+r}, v{SO+r}, v27")

    def store_side():
        e("  s_lshr_b32 s54, s42, s23")
        e("  s_and_b32 s54, s54, 1")
        e("  s_mul_i32 s54, s54, 127")

    def next_slot_addr():
        e(f"  s_add_u32 s55, s24, {TILE}")
        e("  s_cmp_eq_u32 s55, s41")
        e("  s_cselect_b32 s55, s25, s55")
        e("  v_add_u32 v30, s55, v28")
        e("  v_add_u32 v31, s55, v29")

    usetbl = p.numa in ("probe", "ws", "guess")
    nT = max(p.n0 - S, 1)

    e("  s_mov_b32 s23, 0")
    peel[0] = True
    vwait("L0")
    lst(0)
    lg = []

    def lop(fn, tag):
        fn(); lg.append(tag)

    def lwait(tag):
        idx = len(lg) - 1 - lg[::-1].index(tag)
        e(f"  s_waitcnt lgkmcnt({min(len(lg) - 1 - idx, 15)})")

    for s in range(6):
        lop(lambda: xread(s), f"x{s}")
    for t in range(2):
        for s in range(6):
            lop(lambda: wread(s, t), f"w{t}_{s}")
    store_side()
    for r in range(4):
        store_offsets(r)
    items = []
    for n in range(npro, S):
        items += dma_items(n)

    def first_reuse():
        for l in adv("s22"): e(l)
        e("  s_mov_b32 s24, s25")
        for l in side_calc(str(S)): e(l)
        dma_one(0, "s24", f"L{S}")
    items += [first_reuse] + [(lambda i=i: dma_one(i, "s24", f"L{S}")) for i in range(1, 6)]
    nit = len(items)
    done = 0
    for t in range(12):
        if t == 11:
            next_slot_addr()
            vwait("L1")
        for s in range(6):
            lwait(f"w{t}_{s}")
            mfma(t, s)
            if t + 2 < 12:
                lop(lambda: wread(s, t + 2), f"w{t+2}_{s}")
            if t >= 3 and (t & 1) == 1 and 1 <= s <= 4:
                cvt(t - 3, s - 1)
            if t == 10 and 1 <= s <= 4:
                x4store(s - 1, "X4_0")
            if t == 11:
                xread(s)
            if 1 <= t <= 9 and s == 5:
                while done * 9 < nit * t:
                    items[done](); done += 1
    for l in adv("s22"): e(l)
    e("  s_mov_b32 s24, s55")
    e("  s_mov_b32 s23, 1")

    seq = list(vm)

    def count_for(n):
        q = list(seq)
        for it in range(1, n + 1):
            q += [f"X2_{it-1}"] * 4
            if it + S < NT:
                q += [f"L{it+S}"] * 6
            q += [f"X4_{it}"] * 4
        tag = f"L{n+1}"
        idx = len(q) - 1 - q[::-1].index(tag)
        c = len(q) - 1 - idx
        if p.thr >= 0:
            cut = len(q)
            for it in range(n, max(n - p.thr, 0), -1):
                cut -= 8 + (6 if it + S < NT else 0)
            c = min(c, len(q) - cut)
        return min(c, 63)
    cnts = {n: count_for(n) for n in range(1, NT - 1)}
    common = max(set(cnts.values()), key=list(cnts.values()).count)
    special = [n for n in cnts if cnts[n] != common]
    e(".p2align 6")
    e("L_loop:")
    lst(0)
    for t in range(12):
        if t == 11:
            e(f"  s_cmp_eq_u32 s23, {NT-1}")
            e("  s_cbranch_scc1 L_last")
            next_slot_addr()
            for n in special:
                e(f"  s_cmp_eq_u32 s23, {n}")
                e(f"  s_cbranch_scc1 L_w{n}")
            e(f"  s_waitcnt vmcnt({common})")
            e("L_wdone:")
            lst(3)
        for s in range(6):
            if t == 0 and not (stamp and p.lstamp):
                e(f"  s_waitcnt lgkmcnt({5-s})")
            mfma(t, s)
            if t == 0 and s == 5 and usetbl and p.numa != "guess":
                e(f"  s_cmp_eq_u32 s23, {nT}")
                e("  s_cbranch_scc1 L_tload")
                e("L_tload_done:")
            if t == 1 and s < 4:
                cvt(10, s)
            if t == 2 and s == 0 and p.swin >= 0:
                e(f"  s_waitcnt vmcnt({p.swin})")
            if t == 10 and s == 1 and p.swin >= 0:
                e(f"  s_waitcnt vmcnt({p.swin})")
            if t == 2 and s < 4:
                e(f"  buffer_store_dwordx2 v[{Q+2*s}:{Q+2*s+1}], v{SO+4+s}, s[8:11], s21 offen {p.st}")
            if t == 2 and s == 4:
                for l in adv("s21"): e(l)
                store_side()
            if t == 4 and 1 <= s <= 4:
                store_offsets(s - 1)
            if t == 2 and s == 5:
                lst(1)
                if usetbl:
                    e(f"  s_cmp_eq_u32 s23, {nT}")
                    e("  s_cbranch_scc1 L_table")
                    e("L_table_done:")
                e(f"  s_add_u32 s27, s23, {S}")
                for l in side_calc("s27"): e(l)
            if p.d0 <= t <= p.d0 + 5 and s == 0:
                i = t - p.d0
                e(f"  s_cmp_ge_u32 s23, {NT-S}")
                e(f"  s_cbranch_scc1 L_nodma{i}")
                e(f"  s_mov_b32 m0, s24" if i == 0 else "  s_add_u32 m0, m0, 0x400")
                e(f"  v_xor_b32 v56, s43, v{10+i}")
                e(f"  v_mad_u32_u24 v56, v56, s44, v{16+i}")
                if p.win >= 0: e(f"  s_waitcnt vmcnt({p.win})")
                e(f"  buffer_load_dwordx4 v56, s[4:7], s22 offen {p.ld} lds")
                e(f"L_nodma{i}:")
            if t == p.d0 + 6 and s == 0:
                lst(2)
            if t >= 3 and (t & 1) == 1 and 1 <= s <= 4:
                cvt(t - 3, s - 1)
            if t == 10 and 1 <= s <= 4:
                r = s - 1
                e(f"  buffer_store_dwordx4 v[{P+4*r}:{P+4*r+3}], v{SO+r}, s[8:11], s21 offen {p.st}")
            if t == 11:
                xread(s)
    for l in adv("s22"): e(l)
    e("  s_mov_b32 s24, s55")
    e("  s_add_u32 s23, s23, 1")
    e("  s_branch L_loop")
    e("L_last:")
    for s in range(6):
        mfma(11, s)
        if 1 <= s <= 4:
            cvt(8, s - 1)
    e("  s_nop 7")
    for r in range(4):
        cvt(10, r)
    for r in range(4):
        e(f"  buffer_store_dwordx2 v[{Q+2*r}:{Q+2*r+1}], v{SO+4+r}, s[8:11], s21 offen {p.st}")
    if stamp:
        st("laststore")
        e("  s_waitcnt vmcnt(0) lgkmcnt(0)")
        st("end")
        e("  s_getreg_b32 s56, hwreg(HW_REG_XCC_ID)")
        e("  s_getreg_b32 s57, hwreg(HW_REG_HW_ID)")
        e("  s_waitcnt lgkmcnt(0)")
        e("  s_lshl_b32 s58, s2, 2")
        e("  s_add_u32 s58, s58, s20")
        e("  s_lshl_b32 s58, s58, 7")
        e("  s_lshl_b32 s59, s58, 1")
        e("  s_add_u32 s59, s59, 0x40000")
        e("  v_lshl_add_u32 v1, v0, 2, s59")
        e("  global_store_dword v1, v144, s[70:71]")
        e("  v_mov_b32 v1, s58")
        e("  s_mov_b64 exec, 1")
        for k in range(len(names)):
            e(f"  v_mov_b32 v2, s{76+2*k}")
            e(f"  global_store_dword v1, v2, s[70:71] offset:{4*k}")
        for k in range(9):
            e(f"  v_readlane_b32 s59, v144, {k}")
            e("  s_nop 2")
            e("  v_mov_b32 v2, s59")
            e(f"  global_store_dword v1, v2, s[70:71] offset:{64+4*k}")
        e("  global_store_dword v1, v219, s[70:71] offset:104")
        e("  v_mov_b32 v2, s40")
        e("  global_store_dword v1, v2, s[70:71] offset:108")
        e("  v_mov_b32 v2, s42")
        e("  global_store_dword v1, v2, s[70:71] offset:112")
        e("  v_mov_b32 v2, s73")
        e("  global_store_dword v1, v2, s[70:71] offset:116")
        e("  v_mov_b32 v2, s56")
        e("  global_store_dword v1, v2, s[70:71] offset:120")
        e("  v_mov_b32 v2, s57")
        e("  global_store_dword v1, v2, s[70:71] offset:124")
    e("L_end:")
    e("  s_endpgm")
    for n in special:
        e(f"L_w{n}:")
        e(f"  s_waitcnt vmcnt({cnts[n]})")
        e("  s_branch L_wdone")
    if usetbl and p.numa != "guess":
        e("L_tload:")
        e("  s_load_dword s72, s[36:37], 0x0" if probe else "  s_load_dword s72, s[62:63], 0x0")
        e("  s_branch L_tload_done")
    if usetbl:
        e("L_table:")
        if probe:
            e("  s_mov_b32 s73, 0")
            e("L_table_chk:")
            e("  s_waitcnt lgkmcnt(0)")
            e("  s_cmp_lt_i32 s72, 0")
            e("  s_cbranch_scc1 L_table_done")
            e("  s_bfe_u32 s27, s72, 0x40014")
            e(f"  s_cmp_eq_u32 s27, {NG}")
            e("  s_cbranch_scc1 L_table_ok")
            e("  s_add_u32 s73, s73, 1")
            e("  s_cmp_gt_u32 s73, 8")
            e("  s_cbranch_scc1 L_table_abandon")
            e("  s_load_dword s72, s[36:37], 0x0 glc")
            e("  s_branch L_table_chk")
            e("L_table_abandon:")
            e("  s_or_b32 s74, s72, 0x80000000")
            e("  s_mov_b32 s75, s72")
            e("  s_atomic_cmpswap s[74:75], s[36:37], 0x0 glc")
            e("  s_waitcnt lgkmcnt(0)")
            e("  s_cmp_eq_u32 s74, s72")
            e("  s_cbranch_scc1 L_table_done")
            e("  s_mov_b32 s72, s74")
            e("  s_branch L_table_chk")
            e("L_table_ok:")
            e("  s_bfe_u32 s27, s72, 0x30010")
            e("  s_add_u32 s27, s27, s2")
            e("  s_bfe_u32 s38, s27, 0x10002")
            e("  s_mov_b32 s39, 1")
            e("  s_mov_b32 s40, s72")
        elif p.numa == "ws":
            e("  s_waitcnt lgkmcnt(0)")
            e("  s_bfe_u32 s38, s2, 0x10002")
            e("  s_mov_b32 s39, 1")
            e("  s_mov_b32 s40, s72")
        else:
            e("  s_bfe_u32 s38, s2, 0x10002")
            e("  s_mov_b32 s39, 1")
            e(f"  s_mov_b32 s40, {p.guess}")
        e("  s_branch L_table_done")
    e('.section .rodata,"a"')
    e(".p2align 6")
    e(f".amdhsa_kernel {NAME}_kernel")
    e("  .amdhsa_next_free_vgpr 512")
    e("  .amdhsa_next_free_sgpr 102")
    e("  .amdhsa_accum_offset 256")
    e("  .amdhsa_group_segment_fixed_size 0")
    e("  .amdhsa_kernarg_size 48")
    e("  .amdhsa_user_sgpr_count 2")
    e("  .amdhsa_user_sgpr_kernarg_segment_ptr 1")
    e("  .amdhsa_system_sgpr_workgroup_id_x 1")
    e("  .amdhsa_float_denorm_mode_32 3")
    e(".end_amdhsa_kernel")
    return "\n".join(o) + "\n", names, LDS, cnts


if __name__ == "__main__":
    ap = argparse.ArgumentParser()
    ap.add_argument("-o", default="/dev/stdout")
    for k, v in vars(Opt).items():
        if k.startswith("_"): continue
        if isinstance(v, bool):
            ap.add_argument("--" + k, type=lambda x: bool(int(x)), default=v)
        elif isinstance(v, int):
            ap.add_argument("--" + k, type=lambda x: int(x, 0), default=v)
        else:
            ap.add_argument("--" + k, default=v)
    a = ap.parse_args()
    txt, names, lds, cnts = gen(a)
    open(a.o, "w").write(txt)
    print(a.o, "lds", lds, "cnts", cnts, ",".join(names), file=sys.stderr)
```

```python
import sys, argparse

NAME = "standalone__depthwise_separable__vision"
HDR = """; Kernarg layout for this problem (48 bytes, ptrs only, base s[0:1]):
;   offset  40: d_ws      268435456 bytes workspace
"""
XBYTES = 147456 * 384
TILE = 6144
SB = 49152
NT = 9


class Opt:
    S = 3; order = "inter"; ld = "nt"; st = "sc0 sc1"; wld = ""; stamp = False; lstamp = False
    numa = "probe"; n0 = 4; G = 2; guess = 0; tlb = False; thr = -1; xfirst = False; rounds = 3; win = -1; swin = -1; d0 = 3; pwin = -1; tst = "sc0 sc1"; tw = -1; tn = 0; tst2 = "-"; dyn = 0


def gen(p):
    S = p.S
    XB = 73728
    LDS = XB + 4 * S * TILE
    assert LDS <= 163840
    LG = {1: 0, 2: 1, 4: 2, 8: 3}[p.G]
    NG = -(-27 // p.G)
    assert NG <= 14
    stamp = p.stamp
    o = []
    names = []
    vm = []

    def e(x):
        o.append(x)

    def st(label):
        if stamp:
            k = len(names); names.append(label)
            e(f"  s_memrealtime s[{76+2*k}:{77+2*k}]")

    def vop(txt, tag):
        e(txt); vm.append(tag)

    def vwait(tag):
        idx = len(vm) - 1 - vm[::-1].index(tag)
        n = len(vm) - 1 - idx
        e(f"  s_waitcnt vmcnt({min(n, 63)})")

    e(HDR + f"; @launch grid=(256,1,1) block=(256,1,1) lds={LDS}")
    e('.amdgcn_target "amdgcn-amd-amdhsa--gfx950"')
    e(".text")
    e(f".globl {NAME}_kernel")
    e(".p2align 8")
    e(f".type {NAME}_kernel,@function")
    e(f"{NAME}_kernel:")
    e("  s_cmp_ge_u32 s2, 256")
    e("  s_cbranch_scc1 L_end")
    st("start")
    e("  s_load_dwordx8 s[28:35], s[0:1], 0")
    e("  s_load_dwordx4 s[68:71], s[0:1], 32     ; dbg, ws")
    e("  v_lshrrev_b32 v1, 6, v0")
    e("  v_and_b32 v0, 63, v0                    ; lane")
    e("  v_readfirstlane_b32 s20, v1")
    e("  v_and_b32 v2, 15, v0                    ; j")
    e("  v_lshrrev_b32 v3, 4, v0                 ; g")
    e("  s_movk_i32 s44, 0x180")
    e("  v_mul_u32_u24 v5, 0xc00, v3")
    e("  v_lshl_add_u32 v214, v2, 4, v5          ; pw x4 offset: 8g rows + 16 j")
    e("  v_lshl_add_u32 v215, v2, 3, v5")
    e("  v_add_u32 v215, 0x100, v215")
    e("  v_lshlrev_b32 v216, 4, v3")
    if stamp:
        e("  v_mov_b32 v219, 0")
        e("  s_mov_b32 s73, 0")
    e(f"  s_mul_i32 s64, s20, {32*384}            ; pw offset unit XY")
    e("  s_lshl_b32 s65, s20, 6                  ; dw offset unit XY")
    e("  s_lshr_b32 s27, s20, 1")
    e("  s_add_u32 s27, s27, 4")
    e("  s_and_b32 s45, s20, 1")
    e("  s_lshl_b32 s66, s27, 3")
    e("  s_add_u32 s66, s66, s45")
    e("  s_lshl_b32 s67, s66, 3")
    e(f"  s_mul_i32 s66, s66, {4*384}")
    e("  s_lshr_b32 s47, s2, 3")
    e("  s_lshl_b32 s46, s47, 2")
    e("  s_and_b32 s27, s2, 3")
    e("  s_add_u32 s46, s46, s27                 ; q")
    if p.order == "rot":
        e("  s_mul_i32 s21, s46, 57")
        e("  s_lshr_b32 s21, s21, 9")
        e("  s_mul_i32 s21, s21, 9")
        e("  s_sub_u32 s21, s46, s21                 ; q mod 9")
        e("  s_lshl_b32 s21, s21, 7")
        e("  s_add_u32 s21, s21, s46")
        e(f"  s_mul_i32 s21, s21, {SB}")
        STEP = 128 * SB
    elif p.order == "rot3":
        e("  s_mul_i32 s21, s46, 171")
        e("  s_lshr_b32 s21, s21, 9")
        e("  s_mul_i32 s21, s21, 3")
        e("  s_sub_u32 s21, s46, s21                 ; q mod 3")
        e("  s_mul_i32 s21, s21, 384")
        e("  s_add_u32 s21, s21, s46")
        e(f"  s_mul_i32 s21, s21, {SB}")
        STEP = 128 * SB
    elif p.order == "inter":
        e(f"  s_mul_i32 s21, s46, {SB}")
        STEP = 128 * SB
    elif p.order == "chunk":
        e(f"  s_mul_i32 s21, s46, {SB*9}")
        STEP = SB
    wrap = p.order in ("rot", "rot3")
    e("  s_lshr_b32 s38, s2, 2")
    e("  s_xor_b32 s38, s38, s46")
    e("  s_and_b32 s38, s38, 1")
    e("  s_mov_b32 s39, 0")
    e("  s_mov_b32 s40, 0")
    e("  s_mov_b32 s42, 0")
    e(f"  s_mul_i32 s25, s20, {S*TILE}")
    e(f"  s_add_u32 s25, s25, {XB}")
    e("  s_mov_b32 s26, 0xffff0000")
    e("  s_mov_b32 s7, 0x20000")
    e("  s_mov_b32 s11, 0x20000")
    e("  s_mov_b32 s15, 0x20000")
    e("  s_mov_b32 s19, 0x20000")
    e(f"  s_mov_b32 s6, {XBYTES}")
    e(f"  s_mov_b32 s10, {XBYTES}")
    e(f"  s_mov_b32 s14, {192*384}")
    e("  s_mov_b32 s18, 384")
    probe = p.numa == "probe"
    if probe:
        e("  s_and_b32 s72, s47, 3")
        e("  s_lshr_b32 s27, s47, 3")
        e("  s_lshl_b32 s27, s27, 2")
        e("  s_add_u32 s72, s72, s27")
        e("  s_lshl_b32 s72, s72, 1")
        e("  s_and_b32 s27, s2, 1")
        e("  s_add_u32 s72, s72, s27")
        e("  s_and_b32 s27, s2, 0x26")
        e("  s_or_b32 s27, s27, s20")
        e("  s_cmp_lg_u32 s27, 0")
        e(f"  s_cselect_b32 s72, {NG}, s72")

    def rowmap(src, dst):
        e(f"  v_add_u32 v6, 43, v{src}")
        e(f"  v_add_u32 v7, 22, v{src}")
        e("  v_lshrrev_b32 v6, 6, v6")
        e("  v_lshrrev_b32 v7, 6, v7")
        e(f"  v_mad_u32_u24 v6, v6, 22, v{src}")
        e(f"  v_mad_u32_u24 v{dst}, v7, 21, v6")

    def dma_tables():
        e("  s_movk_i32 s27, 2731")
        e("  s_lshl_b32 s45, s20, 4                  ; 16 w")
        for i in range(6):
            if i:
                e(f"  v_add_u32 v4, {64*i}, v0")
                q = 4
            else:
                q = 0
            e(f"  v_mul_u32_u24 v5, s27, v{q}")
            e("  v_lshrrev_b32 v8, 16, v5               ; m")
            e("  v_bfe_u32 v5, v5, 17, 3                ; (m>>1)&7")
            e("  v_mul_u32_u24 v9, 24, v8")
            e(f"  v_sub_u32 v9, v{q}, v9")
            e("  v_xor_b32 v9, v9, v5")
            e(f"  v_lshlrev_b32 v{16+i}, 4, v9")
            e("  v_add_u32 v8, s45, v8")
            rowmap(8, 10 + i)

    def other_tables():
        e("  s_lshl_b32 s45, s20, 4")
        for r in range(4):
            e(f"  v_lshl_add_u32 v8, v3, 2, {r}")
            e("  v_add_u32 v8, s45, v8")
            rowmap(8, 22 + r)
        e("  v_lshlrev_b32 v26, 4, v2")
        e("  v_lshlrev_b32 v27, 3, v2")
        e("  v_sub_u32 v27, 0x100, v27               ; 256 - 8 j")
        e("  v_lshrrev_b32 v4, 1, v2")
        e("  v_xor_b32 v4, v4, v3                    ; g ^ f")
        e("  v_lshlrev_b32 v4, 4, v4")
        e("  v_mad_u32_u24 v28, v2, s44, v4")
        e("  v_xor_b32 v4, 64, v4")
        e("  v_mad_u32_u24 v29, v2, s44, v4")
        e("  v_lshlrev_b32 v217, 4, v0               ; lane*16")

    def side_calc(j):
        return [f"  s_add_u32 s43, s22, {SB//2}",
                "  s_lshr_b32 s43, s43, 21                 ; page",
                f"  s_lshr_b32 s45, s43, {LG}",
                "  s_lshr_b32 s45, s40, s45",
                "  s_and_b32 s43, s43, s39",
                "  s_xor_b32 s43, s43, s45",
                "  s_xor_b32 s43, s43, s38",
                "  s_and_b32 s43, s43, 1",
                "  s_mul_i32 s43, s43, 127",
                "  s_lshr_b32 s42, s42, 8",
                f"  s_lshl_b32 s45, s43, {8*S}",
                "  s_or_b32 s42, s42, s45"]

    peel = [False]

    def dma_one(i, slot, tag):
        e(f"  s_mov_b32 m0, {slot}" if i == 0 else "  s_add_u32 m0, m0, 0x400")
        e(f"  v_xor_b32 v56, s43, v{10+i}")
        e(f"  v_mad_u32_u24 v56, v56, s44, v{16+i}")
        if peel[0] and p.pwin >= 0: e(f"  s_waitcnt vmcnt({p.pwin})")
        vop(f"  buffer_load_dwordx4 v56, s[4:7], s22 offen {p.ld} lds", tag)

    def adv(reg):
        L = [f"  s_add_u32 {reg}, {reg}, {STEP}"]
        if wrap:
            L.append(f"  s_sub_u32 s45, {reg}, {XBYTES}")
            L.append(f"  s_cselect_b32 {reg}, {reg}, s45")
        return L

    CH = [59, 60, 62][:S] if p.numa != "ws" and not probe else [59, 60, 52][:S]

    def dma_items(n):
        def first():
            if n:
                for l in adv("s22"): e(l)
                e(f"  s_mov_b32 s{CH[n-1]}, s22")
                e(f"  s_add_u32 s24, s24, {TILE}")
            for l in side_calc(str(n)): e(l)
            dma_one(0, "s24", f"L{n}")
        return [first] + [(lambda i=i: dma_one(i, "s24", f"L{n}")) for i in range(1, 6)]

    if p.xfirst:
        dma_tables()
    e("  s_mov_b32 s22, s21")
    e("  s_mov_b32 s24, s25")
    e("  s_waitcnt lgkmcnt(0)")
    st("kernarg")
    e("  s_mov_b32 s12, s32")
    e("  s_and_b32 s13, s33, 0xffff")
    e("  s_mov_b32 s16, s30")
    e("  s_and_b32 s17, s31, 0xffff")
    e("  s_mov_b32 s4, s28")
    e("  s_and_b32 s5, s29, 0xffff")
    e("  s_mov_b32 s8, s34")
    e("  s_and_b32 s9, s35, 0xffff")
    e("  s_mov_b64 s[36:37], s[68:69]")
    if p.numa == "ws":
        e("  s_add_u32 s62, s70, 0x100000")
        e("  s_addc_u32 s63, s71, 0")
    if p.dyn:
        e("  s_and_b32 s27, s2, 7")
        e("  s_lshl_b32 s27, s27, 2")
        e("  s_add_u32 s27, s27, s20")
        e("  s_lshl_b32 s27, s27, 8")
        e("  s_add_u32 s27, s27, 0x200000")
        e("  s_add_u32 s50, s70, s27")
        e("  s_addc_u32 s51, s71, 0")
        e("  s_and_b32 s57, s2, 3")
        e(f"  s_add_u32 s57, s57, {p.dyn*128}")
        e(f"  s_mul_i32 s57, s57, {SB}")
        e("  s_mov_b32 s61, 0x7fffffff")
    SENT = 0x7fc17fc1

    def probe_issue(rnd):
        off = 0x4000 * (5 * rnd + 1) + 0x1100 * (rnd & 1) + 0x300
        a, b = (0, 8192) if (rnd & 1) == 0 else (8192, 0)
        e(f"  s_mov_b32 s49, 0x{SENT:x}")
        e(f"  s_load_dword s48, s[62:63], {hex(off + a)}")
        e(f"  s_load_dword s49, s[62:63], {hex(off + b)}")

    def probe_eval(rnd):
        e("  s_waitcnt lgkmcnt(1)")
        e(f"  s_cmp_lg_u32 s49, 0x{SENT:x}" if (rnd & 1) == 0 else f"  s_cmp_eq_u32 s49, 0x{SENT:x}")
        e("  s_addc_u32 s74, s74, 0")
        e("  s_waitcnt lgkmcnt(0)")

    if probe:
        e(f"  s_cmp_ge_u32 s72, {NG}")
        e("  s_cbranch_scc1 L_noprobe1")
        e(f"  s_lshl_b32 s27, s72, {21+LG}")
        e("  s_add_u32 s27, s27, 0x100000")
        e("  s_add_u32 s62, s28, s27")
        e("  s_addc_u32 s63, s29, 0")
        e("  s_mov_b32 s74, 0")
        e("  s_load_dword s48, s[62:63], 0x0")
        e("L_noprobe1:")
    if p.tlb:
        e("  s_lshl_b32 s27, s47, 2")
        e("  s_add_u32 s27, s27, s20")
        e("  s_sub_u32 s27, s27, 64")
        e("  s_cmp_ge_u32 s27, 54")
        e("  s_cbranch_scc1 L_notlb")
        e("  s_cmp_ge_u32 s27, 27")
        e("  s_cselect_b64 s[50:51], s[34:35], s[28:29]")
        e("  s_cselect_b32 s45, 27, 0")
        e("  s_sub_u32 s27, s27, s45")
        e("  s_lshl_b32 s27, s27, 21")
        e("  s_add_u32 s50, s50, s27")
        e("  s_addc_u32 s51, s51, 0")
        e("  s_load_dword s52, s[50:51], 0x0")
        e("L_notlb:")
    XY = 72; Z = 124; DWF = 150; T = 158; F = 166
    pend = []
    if p.xfirst:
        for f in dma_items(0): f()
    mark = len(o)
    if not p.xfirst:
        dma_tables()
    other_tables()
    tabs = o[mark:]
    del o[mark:]
    vop(f"  buffer_load_dwordx4 v[{XY+48}:{XY+51}], v216, s[16:19], s65 offen", "dwXY")
    per = -(-len(tabs) // 15)
    for ee in range(8):
        vop(f"  buffer_load_dwordx4 v[{XY+4*ee}:{XY+4*ee+3}], v214, s[12:15], s64 offen offset:{384*ee} {p.wld}", f"XY{ee}")
        if ee:
            for l in tabs[:per]: e(l)
            del tabs[:per]
        vop(f"  buffer_load_dwordx2 v[{XY+32+2*ee}:{XY+32+2*ee+1}], v215, s[12:15], s64 offen offset:{384*ee} {p.wld}", f"XY{ee}")
        for l in tabs[:per]: e(l)
        del tabs[:per]
    assert not tabs
    if not probe: st("xyissued")
    if probe:
        e(f"  s_cmp_ge_u32 s72, {NG}")
        e("  s_cbranch_scc1 L_noprobe2")
        e("  s_waitcnt lgkmcnt(0)")
        for rnd in range(p.rounds):
            if rnd == 2:
                e("  s_cmp_lg_u32 s74, 1")
                e("  s_cbranch_scc1 L_probe_done")
            probe_issue(rnd)
            probe_eval(rnd)
        e("L_probe_done:")
        e(f"  s_cmp_ge_u32 s74, {2 if p.rounds > 1 else 1}")
        e("  s_cselect_b32 s27, 1, 0")
        e("  s_getreg_b32 s45, hwreg(HW_REG_XCC_ID, 0, 3)")
        e("  s_lshr_b32 s43, s45, 2")
        e("  s_xor_b32 s27, s27, s43                 ; h (the probed page is even)")
        e("  s_lshl_b32 s27, s27, s72")
        e("  s_lshl_b32 s45, s45, 16")
        e("  s_cmp_eq_u32 s72, 0")
        e("  s_cselect_b32 s45, s45, 0")
        e("  s_or_b32 s27, s27, s45")
        if p.dyn:
            e("  s_cmp_lg_u32 s72, 0")
            e("  s_cbranch_scc1 L_noinit")
            e("  v_and_b32 v4, 31, v0")
            e("  v_lshlrev_b32 v4, 8, v4")
            e("  v_add_u32 v4, 0x200000, v4")
            e("  v_mov_b32 v5, 0")
            e("  global_store_dword v4, v5, s[70:71] sc0 sc1")
            e("  s_waitcnt vmcnt(0)")
            e("L_noinit:")
        e("  s_or_b32 s48, s27, 0x100000")
        e("  s_atomic_add s48, s[36:37], 0x0")
        if stamp:
            e("  s_or_b32 s74, s74, 0x10000")
            e("  v_writelane_b32 v219, s74, 0")
        e("L_noprobe2:")
    if probe: st("xyissued")
    st("probe")

    def zload(k):
        if k == 0:
            vop(f"  buffer_load_dwordx2 v[{Z+24}:{Z+25}], v216, s[16:19], s67 offen", "dwZ")
        else:
            ee = (k - 1) >> 1
            if (k - 1) & 1 == 0:
                vop(f"  buffer_load_dwordx4 v[{Z+4*ee}:{Z+4*ee+3}], v214, s[12:15], s66 offen offset:{384*ee} {p.wld}", f"Z{ee}")
            else:
                vop(f"  buffer_load_dwordx2 v[{Z+16+2*ee}:{Z+16+2*ee+1}], v215, s[12:15], s66 offen offset:{384*ee} {p.wld}", f"Z{ee}")
    pend += [(lambda k=k: zload(k)) for k in range(9)]
    nxt = 1 if p.xfirst else 0
    npro = min(S, 3) if p.xfirst else min(S, 2)
    for n in range(nxt, npro):
        pend += dma_items(n)

    def prep_unit(base, nep, dwbase, pre, wr, share):
        nrow = 2 * nep
        groups = 6 * nep
        k = 0
        done = 0
        for ep in range(nep):
            vwait(f"{pre}{2*ep+1}")
            if pre == "XY" and ep == 0:
                st("w0")
            e(f"  v_lshlrev_b32 v{DWF+2*ep}, 16, v{dwbase+ep}")
            e(f"  v_and_b32 v{DWF+2*ep+1}, s26, v{dwbase+ep}")
            for cp in range(6):
                if cp < 4:
                    i0 = base + 4 * (2 * ep) + cp
                    i1 = base + 4 * (2 * ep + 1) + cp
                else:
                    i0 = base + 4 * nrow + 2 * (2 * ep) + (cp - 4)
                    i1 = base + 4 * nrow + 2 * (2 * ep + 1) + (cp - 4)
                t = T + 4 * (k & 1)
                k += 1
                e(f"  v_lshlrev_b32 v{t}, 16, v{i0}")
                e(f"  v_lshlrev_b32 v{t+1}, 16, v{i1}")
                e(f"  v_and_b32 v{t+2}, s26, v{i0}")
                e(f"  v_and_b32 v{t+3}, s26, v{i1}")
                e(f"  v_pk_mul_f32 v[{t}:{t+1}], v[{t}:{t+1}], v[{DWF+2*ep}:{DWF+2*ep+1}]")
                e(f"  v_pk_mul_f32 v[{t+2}:{t+3}], v[{t+2}:{t+3}], v[{DWF+2*ep}:{DWF+2*ep+1}]")
                e(f"  v_cvt_pk_bf16_f32 v{F+4*(2*cp)+ep}, v{t}, v{t+1}")
                e(f"  v_cvt_pk_bf16_f32 v{F+4*(2*cp+1)+ep}, v{t+2}, v{t+3}")
                if ep == nep - 1:
                    wr(2 * cp); wr(2 * cp + 1)
                while done * groups < share * k and pend:
                    pend.pop(0)(); done += 1

    e(f"  s_mul_i32 s27, s20, {12*1024}")
    e("  v_add_u32 v218, s27, v217")
    share = min(len(pend), 15)
    prep_unit(XY, 4, XY + 48, "XY", lambda tt: e(f"  ds_write_b128 v218, v[{F+4*tt}:{F+4*tt+3}] offset:{tt*1024}"), share)
    st("prep0")
    e("  s_lshr_b32 s27, s20, 1")
    e("  s_add_u32 s27, s27, 4")
    e(f"  s_mul_i32 s27, s27, {12*1024}")
    e("  s_and_b32 s53, s20, 1")
    e("  s_lshl_b32 s53, s53, 3")
    e("  s_add_u32 s27, s27, s53")
    e("  v_add_u32 v218, s27, v217")
    prep_unit(Z, 2, Z + 24, "Z", lambda tt: e(f"  ds_write_b64 v218, v[{F+4*tt}:{F+4*tt+1}] offset:{tt*1024}"), len(pend))
    assert not pend
    e("  v_add_u32 v30, s25, v28")
    e("  v_add_u32 v31, s25, v29")
    e("  v_add_u32 v218, 0x10000, v217")
    e(f"  s_add_u32 s41, s25, {S*TILE}")
    e("  s_waitcnt lgkmcnt(0)")
    st("prebar")
    e("  s_barrier")
    st("postbar")

    def wreg(s, t):
        f = s * 12 + t
        if f < 64:
            return f"a[{4*f}:{4*f+3}]"
        return f"v[{224+4*(f-64)}:{224+4*(f-64)+3}]"

    def wread(s, t):
        f = s * 12 + t
        if f < 64:
            e(f"  ds_read_b128 {wreg(s,t)}, v217 offset:{f*1024}")
        else:
            e(f"  ds_read_b128 {wreg(s,t)}, v218 offset:{(f-64)*1024}")

    XF = 32; SO = 62; ACC = 72; P = 120; Q = 136

    def lst(k):
        if stamp and p.lstamp:
            e("  s_memrealtime s[74:75]")
            e(f"  s_add_u32 m0, s23, {16*k}")
            e("  s_waitcnt lgkmcnt(0)")
            e("  v_writelane_b32 v144, s74, m0")

    def xread(s):
        e(f"  ds_read_b128 v[{XF+4*s}:{XF+4*s+3}], v{30+(s&1)} offset:{128*(s>>1)}")

    def mfma(t, s):
        c = "0" if s == 0 else f"v[{ACC+4*t}:{ACC+4*t+3}]"
        e(f"  v_mfma_f32_16x16x32_bf16 v[{ACC+4*t}:{ACC+4*t+3}], v[{XF+4*s}:{XF+4*s+3}], {wreg(s,t)}, {c}")

    def cvt(tp, r):
        d = P + 4 * r + tp // 2 if tp < 8 else Q + 2 * r + (tp - 8) // 2
        e(f"  v_cvt_pk_bf16_f32 v{d}, v{ACC+4*tp+r}, v{ACC+4*(tp+1)+r}")

    def x2store(r, tag):
        vop(f"  buffer_store_dwordx2 v[{Q+2*r}:{Q+2*r+1}], v{SO+4+r}, s[8:11], s21 offen {p.st}", tag)

    def x4store(r, tag):
        vop(f"  buffer_store_dwordx4 v[{P+4*r}:{P+4*r+3}], v{SO+r}, s[8:11], s21 offen {p.st}", tag)

    def store_offsets(r):
        e(f"  v_xor_b32 v57, s54, v{22+r}")
        e(f"  v_mad_u32_u24 v{SO+r}, v57, s44, v26")
        e(f"  v_add_u32 v{SO+4+r}, v{SO+r}, v27")

    def store_side():
        e(f"  s_bfe_u32 s54, s42, {hex(0x70000 + 8 * side_pos[0])}")

    def next_slot_addr():
        e(f"  s_add_u32 s55, s24, {TILE}")
        e("  s_cmp_eq_u32 s55, s41")
        e("  s_cselect_b32 s55, s25, s55")
        e("  v_add_u32 v30, s55, v28")
        e("  v_add_u32 v31, s55, v29")

    usetbl = p.numa in ("probe", "ws", "guess")
    side_pos = [0]
    nT = max(p.n0 - S, 1)

    e("  s_mov_b32 s23, 0")
    peel[0] = True
    vwait("L0")
    lst(0)
    lg = []

    def lop(fn, tag):
        fn(); lg.append(tag)

    def lwait(tag):
        idx = len(lg) - 1 - lg[::-1].index(tag)
        e(f"  s_waitcnt lgkmcnt({min(len(lg) - 1 - idx, 15)})")

    for s in range(6):
        lop(lambda: xread(s), f"x{s}")
    for t in range(2):
        for s in range(6):
            lop(lambda: wread(s, t), f"w{t}_{s}")
    side_pos[0] = S - (npro - 1)
    store_side()
    side_pos[0] = 1
    for r in range(4):
        store_offsets(r)
    items = []
    for n in range(npro, S):
        items += dma_items(n)

    def first_reuse():
        for l in adv("s22"): e(l)
        e(f"  s_mov_b32 s{CH[S-1]}, s22")
        e("  s_mov_b32 s24, s25")
        for l in side_calc(str(S)): e(l)
        dma_one(0, "s24", f"L{S}")
    items += [first_reuse] + [(lambda i=i: dma_one(i, "s24", f"L{S}")) for i in range(1, 6)]
    nit = len(items)
    done = 0
    for t in range(12):
        if t == 11:
            next_slot_addr()
            vwait("L1")
        for s in range(6):
            lwait(f"w{t}_{s}")
            mfma(t, s)
            if t + 2 < 12:
                lop(lambda: wread(s, t + 2), f"w{t+2}_{s}")
            if t >= 3 and (t & 1) == 1 and 1 <= s <= 4:
                cvt(t - 3, s - 1)
            if t == 10 and 1 <= s <= 4:
                x4store(s - 1, "X4_0")
            if t == 11:
                xread(s)
            if 1 <= t <= 9 and s == 5:
                while done * 9 < nit * t:
                    items[done](); done += 1
    for l in adv("s22"): e(l)
    e("  s_mov_b32 s24, s55")
    e("  s_mov_b32 s23, 1")

    seq = list(vm)

    def count_for(n):
        q = list(seq)
        for it in range(1, n + 1):
            q += [f"X2_{it-1}"] * 4
            if it + S < NT:
                q += [f"L{it+S}"] * 6
            q += [f"X4_{it}"] * 4
        tag = f"L{n+1}"
        idx = len(q) - 1 - q[::-1].index(tag)
        c = len(q) - 1 - idx
        if p.thr >= 0:
            cut = len(q)
            for it in range(n, max(n - p.thr, 0), -1):
                cut -= 8 + (6 if it + S < NT else 0)
            c = min(c, len(q) - cut)
        return min(c, 63)
    cnts = {n: count_for(n) for n in range(1, NT - 1)}
    NS = NT - max(S, p.tn)
    specials = []
    tst2 = p.tst if p.tst2 == "-" else p.tst2

    def body(tail):
        sfx = "t" if tail else "s"
        its = [n for n in (range(NS, NT - 1) if tail else range(1, NS))]
        vals = [cnts[n] for n in its]
        common = max(set(vals), key=vals.count) if vals else 0
        special = [n for n in its if cnts[n] != common]
        specials.extend((n, sfx) for n in special)
        stf = p.tst if tail else p.st
        sw = p.tw if tail and p.tw >= 0 else p.swin
        hasdma = (not tail) or NS + S < NT
        e(".p2align 6" if not tail else ".p2align 3")
        e(f"L_loop{sfx}:")
        lst(0)
        for t in range(12):
            if t == 11:
                if tail:
                    e("  s_cmp_eq_u32 s53, 0")
                    e("  s_cbranch_scc1 L_last")
                if p.dyn and not tail:
                    e(f"  s_add_u32 s53, s22, {STEP}")
                    e("  s_cmp_ge_u32 s23, s61")
                    e("  s_cbranch_scc0 L_nocl2")
                    e("  s_waitcnt lgkmcnt(0)")
                    e(f"  s_mul_i32 s53, s56, {4*SB}")
                    e("  s_add_u32 s53, s53, s57")
                    e("L_nocl2:")
                next_slot_addr()
                for n in special:
                    e(f"  s_cmp_eq_u32 s53, {NT-1-n}" if tail else f"  s_cmp_eq_u32 s23, {n}")
                    e(f"  s_cbranch_scc1 L_w{n}")
                e(f"  s_waitcnt vmcnt({common})")
                e(f"L_wdone{sfx}:")
                lst(3)
            for s in range(6):
                if t == 0 and not (stamp and p.lstamp):
                    e(f"  s_waitcnt lgkmcnt({5-s})")
                mfma(t, s)
                if t == 0 and s == 5 and usetbl and p.numa != "guess" and not tail:
                    e(f"  s_cmp_eq_u32 s23, {nT}")
                    e("  s_cbranch_scc1 L_tload")
                    e("L_tload_done:")
                if t == 0 and s == 5 and p.dyn and not tail:
                    e("  s_cmp_ge_u32 s23, s61")
                    e("  s_cbranch_scc0 L_noclaim")
                    e("  s_mov_b32 s56, 1")
                    e("  s_atomic_add s56, s[50:51], 0x0 glc")
                    e("L_noclaim:")
                if t == 1 and s < 4:
                    cvt(10, s)
                if t == 2 and s == 0 and sw >= 0:
                    e(f"  s_waitcnt vmcnt({sw})")
                if t == 10 and s == 1 and sw >= 0:
                    e(f"  s_waitcnt vmcnt({sw})")
                if t == 2 and s < 4:
                    e(f"  buffer_store_dwordx2 v[{Q+2*s}:{Q+2*s+1}], v{SO+4+s}, s[8:11], s21 offen {stf}")
                if t == 2 and s == 4:
                    e(f"  s_mov_b32 s21, s{CH[0]}")
                    for i in range(S - 1):
                        e(f"  s_mov_b32 s{CH[i]}, s{CH[i+1]}")
                    e(f"  s_mov_b32 s{CH[S-1]}, s22")
                    store_side()
                if t == 4 and 1 <= s <= 4:
                    store_offsets(s - 1)
                if t == 2 and s == 5:
                    lst(1)
                    if usetbl and not tail:
                        e(f"  s_cmp_eq_u32 s23, {nT}")
                        e("  s_cbranch_scc1 L_table")
                        e("L_table_done:")
                    if hasdma:
                        for l in side_calc("s27"): e(l)
                    else:
                        e("  s_lshr_b32 s42, s42, 8")
                if p.d0 <= t <= p.d0 + 5 and s == 0 and hasdma:
                    i = t - p.d0
                    if tail:
                        e(f"  s_cmp_ge_u32 s23, {NT-S}")
                        e(f"  s_cbranch_scc1 L_nodma{i}")
                    e(f"  s_mov_b32 m0, s24" if i == 0 else "  s_add_u32 m0, m0, 0x400")
                    e(f"  v_xor_b32 v56, s43, v{10+i}")
                    e(f"  v_mad_u32_u24 v56, v56, s44, v{16+i}")
                    if p.win >= 0: e(f"  s_waitcnt vmcnt({p.win})")
                    e(f"  buffer_load_dwordx4 v56, s[4:7], s22 offen {p.ld} lds")
                    if tail:
                        e(f"L_nodma{i}:")
                if t == p.d0 + 6 and s == 0:
                    lst(2)
                if t >= 3 and (t & 1) == 1 and 1 <= s <= 4:
                    cvt(t - 3, s - 1)
                if t == 10 and 1 <= s <= 4:
                    r = s - 1
                    e(f"  buffer_store_dwordx4 v[{P+4*r}:{P+4*r+3}], v{SO+r}, s[8:11], s21 offen {stf}")
                if t == 11:
                    xread(s)
        if p.dyn and not tail:
            e("  s_mov_b32 s22, s53")
        elif hasdma:
            for l in adv("s22"): e(l)
        e("  s_mov_b32 s24, s55")
        e("  s_add_u32 s23, s23, 1")
        if tail:
            e("  s_sub_u32 s53, s53, 1")
            e("  s_branch L_loopt")
        else:
            e(f"  s_cmp_lt_u32 s22, {XBYTES}" if p.dyn else f"  s_cmp_lt_u32 s23, {NS}")
            e("  s_cbranch_scc1 L_loops")
            e(f"  s_mov_b32 s53, {NT-1-NS}")

    assert nT < NS
    if p.dyn:
        assert p.order == "inter" and p.tn == 0 and p.dyn - S - 1 > nT and not p.tlb
    body(False)
    body(True)
    e("L_last:")
    for s in range(6):
        mfma(11, s)
        if 1 <= s <= 4:
            cvt(8, s - 1)
    e("  s_nop 7")
    for r in range(4):
        cvt(10, r)
    if p.tw >= 0:
        e(f"  s_waitcnt vmcnt({p.tw})")
    for r in range(4):
        e(f"  buffer_store_dwordx2 v[{Q+2*r}:{Q+2*r+1}], v{SO+4+r}, s[8:11], s21 offen {tst2}")
    if stamp:
        st("laststore")
        e("  s_waitcnt vmcnt(0) lgkmcnt(0)")
        st("end")
        e("  s_getreg_b32 s56, hwreg(HW_REG_XCC_ID)")
        e("  s_getreg_b32 s57, hwreg(HW_REG_HW_ID)")
        e("  s_waitcnt lgkmcnt(0)")
        e("  s_lshl_b32 s58, s2, 2")
        e("  s_add_u32 s58, s58, s20")
        e("  s_lshl_b32 s58, s58, 7")
        e("  s_lshl_b32 s59, s58, 1")
        e("  s_add_u32 s59, s59, 0x40000")
        e("  v_lshl_add_u32 v1, v0, 2, s59")
        e("  global_store_dword v1, v144, s[70:71]")
        e("  v_mov_b32 v1, s58")
        e("  s_mov_b64 exec, 1")
        for k in range(len(names)):
            e(f"  v_mov_b32 v2, s{76+2*k}")
            e(f"  global_store_dword v1, v2, s[70:71] offset:{4*k}")
        for k in range(9):
            e(f"  v_readlane_b32 s59, v144, {k}")
            e("  s_nop 2")
            e("  v_mov_b32 v2, s59")
            e(f"  global_store_dword v1, v2, s[70:71] offset:{64+4*k}")
        e("  global_store_dword v1, v219, s[70:71] offset:104")
        e("  v_mov_b32 v2, s40")
        e("  global_store_dword v1, v2, s[70:71] offset:108")
        e("  v_mov_b32 v2, s23")
        e("  global_store_dword v1, v2, s[70:71] offset:112")
        e("  v_mov_b32 v2, s73")
        e("  global_store_dword v1, v2, s[70:71] offset:116")
        e("  v_mov_b32 v2, s56")
        e("  global_store_dword v1, v2, s[70:71] offset:120")
        e("  v_mov_b32 v2, s57")
        e("  global_store_dword v1, v2, s[70:71] offset:124")
    e("L_end:")
    e("  s_endpgm")
    for n, sfx in specials:
        e(f"L_w{n}:")
        e(f"  s_waitcnt vmcnt({cnts[n]})")
        e(f"  s_branch L_wdone{sfx}")
    if usetbl and p.numa != "guess":
        e("L_tload:")
        e("  s_load_dword s72, s[36:37], 0x0" if probe else "  s_load_dword s72, s[62:63], 0x0")
        e("  s_branch L_tload_done")
    if usetbl:
        e("L_table:")
        if probe:
            e("  s_mov_b32 s73, 0")
            e("L_table_chk:")
            e("  s_waitcnt lgkmcnt(0)")
            e("  s_cmp_lt_i32 s72, 0")
            e("  s_cbranch_scc1 L_table_done")
            e("  s_bfe_u32 s27, s72, 0x40014")
            e(f"  s_cmp_eq_u32 s27, {NG}")
            e("  s_cbranch_scc1 L_table_ok")
            e("  s_add_u32 s73, s73, 1")
            e("  s_cmp_gt_u32 s73, 8")
            e("  s_cbranch_scc1 L_table_abandon")
            e("  s_load_dword s72, s[36:37], 0x0 glc")
            e("  s_branch L_table_chk")
            e("L_table_abandon:")
            e("  s_or_b32 s74, s72, 0x80000000")
            e("  s_mov_b32 s75, s72")
            e("  s_atomic_cmpswap s[74:75], s[36:37], 0x0 glc")
            e("  s_waitcnt lgkmcnt(0)")
            e("  s_cmp_eq_u32 s74, s72")
            e("  s_cbranch_scc1 L_table_done")
            e("  s_mov_b32 s72, s74")
            e("  s_branch L_table_chk")
            e("L_table_ok:")
            e("  s_bfe_u32 s27, s72, 0x30010")
            e("  s_add_u32 s27, s27, s2")
            e("  s_bfe_u32 s38, s27, 0x10002")
            e("  s_mov_b32 s39, 1")
            e("  s_mov_b32 s40, s72")
            if p.dyn: e(f"  s_mov_b32 s61, {p.dyn-S-1}")
        elif p.numa == "ws":
            if p.dyn: e(f"  s_mov_b32 s61, {p.dyn-S-1}")
            e("  s_waitcnt lgkmcnt(0)")
            e("  s_bfe_u32 s38, s2, 0x10002")
            e("  s_mov_b32 s39, 1")
            e("  s_mov_b32 s40, s72")
        else:
            e("  s_bfe_u32 s38, s2, 0x10002")
            e("  s_mov_b32 s39, 1")
            e(f"  s_mov_b32 s40, {p.guess}")
        e("  s_branch L_table_done")
    e('.section .rodata,"a"')
    e(".p2align 6")
    e(f".amdhsa_kernel {NAME}_kernel")
    e("  .amdhsa_next_free_vgpr 512")
    e("  .amdhsa_next_free_sgpr 102")
    e("  .amdhsa_accum_offset 256")
    e("  .amdhsa_group_segment_fixed_size 0")
    e("  .amdhsa_kernarg_size 48")
    e("  .amdhsa_user_sgpr_count 2")
    e("  .amdhsa_user_sgpr_kernarg_segment_ptr 1")
    e("  .amdhsa_system_sgpr_workgroup_id_x 1")
    e("  .amdhsa_float_denorm_mode_32 3")
    e(".end_amdhsa_kernel")
    return "\n".join(o) + "\n", names, LDS, cnts


if __name__ == "__main__":
    ap = argparse.ArgumentParser()
    ap.add_argument("-o", default="/dev/stdout")
    for k, v in vars(Opt).items():
        if k.startswith("_"): continue
        if isinstance(v, bool):
            ap.add_argument("--" + k, type=lambda x: bool(int(x)), default=v)
        elif isinstance(v, int):
            ap.add_argument("--" + k, type=lambda x: int(x, 0), default=v)
        else:
            ap.add_argument("--" + k, default=v)
    a = ap.parse_args()
    txt, names, lds, cnts = gen(a)
    open(a.o, "w").write(txt)
    print(a.o, "lds", lds, "cnts", cnts, ",".join(names), file=sys.stderr)
```

```python
import sys, argparse

NAME = "standalone__depthwise_separable__vision"
HDR = """; Kernarg layout for this problem (48 bytes, ptrs only, base s[0:1]):
;   offset  40: d_ws      268435456 bytes workspace
"""
XBYTES = 147456 * 384
TILE = 6144
SB = 49152
NT = 9


class Opt:
    S = 2; order = "inter"; ld = "nt"; st = "sc0 sc1"; wld = ""; stamp = False; lstamp = False
    numa = "probe"; n0 = 3; G = 2; guess = 0; tlb = False; thr = -1; xfirst = False; rounds = 3; win = -1; swin = -1; d0 = 3; pwin = -1; tst = "sc0 sc1"; tw = -1; tn = 0; tst2 = "-"; dyn = 0; sched = "6,6,6,6,6,6,6,0,0"; d1 = 8; early = False; nomfma = 0; dbgwarm = True; tpos = 5; uw = -1; otouch = 0


def gen(p):
    S = p.S
    XB = 73728
    LDS = XB + 4 * S * TILE
    assert LDS <= 163840
    LG = {1: 0, 2: 1, 4: 2, 8: 3}[p.G]
    NG = -(-27 // p.G)
    assert NG <= 14
    stamp = p.stamp
    o = []
    names = []
    vm = []

    def e(x):
        o.append(x)

    def st(label):
        if stamp:
            k = len(names); names.append(label)
            e(f"  s_memrealtime s[{76+2*k}:{77+2*k}]")

    uwin = [False]

    def vop(txt, tag):
        if uwin[0] and p.uw >= 0:
            e(f"  s_waitcnt vmcnt({p.uw})")
        e(txt); vm.append(tag)

    def vwait(tag):
        idx = len(vm) - 1 - vm[::-1].index(tag)
        n = len(vm) - 1 - idx
        e(f"  s_waitcnt vmcnt({min(n, 63)})")

    e(HDR + f"; @launch grid=(256,1,1) block=(256,1,1) lds={LDS}")
    e('.amdgcn_target "amdgcn-amd-amdhsa--gfx950"')
    e(".text")
    e(f".globl {NAME}_kernel")
    e(".p2align 8")
    e(f".type {NAME}_kernel,@function")
    e(f"{NAME}_kernel:")
    e("  s_cmp_ge_u32 s2, 256")
    e("  s_cbranch_scc1 L_end")
    st("start")
    e("  s_load_dwordx8 s[28:35], s[0:1], 0")
    e("  s_load_dwordx4 s[68:71], s[0:1], 32     ; dbg, ws")
    e("  v_lshrrev_b32 v1, 6, v0")
    e("  v_and_b32 v0, 63, v0                    ; lane")
    e("  v_readfirstlane_b32 s20, v1")
    e("  v_and_b32 v2, 15, v0                    ; j")
    e("  v_lshrrev_b32 v3, 4, v0                 ; g")
    e("  s_movk_i32 s44, 0x180")
    e("  v_mul_u32_u24 v5, 0xc00, v3")
    e("  v_lshl_add_u32 v214, v2, 4, v5          ; pw x4 offset: 8g rows + 16 j")
    e("  v_lshl_add_u32 v215, v2, 3, v5")
    e("  v_add_u32 v215, 0x100, v215")
    e("  v_lshlrev_b32 v216, 4, v3")
    if stamp:
        e("  v_mov_b32 v219, 0")
        e("  s_mov_b32 s73, 0")
    e(f"  s_mul_i32 s64, s20, {32*384}            ; pw offset unit XY")
    e("  s_lshl_b32 s65, s20, 6                  ; dw offset unit XY")
    e("  s_lshr_b32 s27, s20, 1")
    e("  s_add_u32 s27, s27, 4")
    e("  s_and_b32 s45, s20, 1")
    e("  s_lshl_b32 s66, s27, 3")
    e("  s_add_u32 s66, s66, s45")
    e("  s_lshl_b32 s67, s66, 3")
    e(f"  s_mul_i32 s66, s66, {4*384}")
    e("  s_lshr_b32 s47, s2, 3")
    e("  s_lshl_b32 s46, s47, 2")
    e("  s_and_b32 s27, s2, 3")
    e("  s_add_u32 s46, s46, s27                 ; q")
    if p.order == "rot":
        e("  s_mul_i32 s21, s46, 57")
        e("  s_lshr_b32 s21, s21, 9")
        e("  s_mul_i32 s21, s21, 9")
        e("  s_sub_u32 s21, s46, s21                 ; q mod 9")
        e("  s_lshl_b32 s21, s21, 7")
        e("  s_add_u32 s21, s21, s46")
        e(f"  s_mul_i32 s21, s21, {SB}")
        STEP = 128 * SB
    elif p.order == "rot3":
        e("  s_mul_i32 s21, s46, 171")
        e("  s_lshr_b32 s21, s21, 9")
        e("  s_mul_i32 s21, s21, 3")
        e("  s_sub_u32 s21, s46, s21                 ; q mod 3")
        e("  s_mul_i32 s21, s21, 384")
        e("  s_add_u32 s21, s21, s46")
        e(f"  s_mul_i32 s21, s21, {SB}")
        STEP = 128 * SB
    elif p.order == "inter":
        e(f"  s_mul_i32 s21, s46, {SB}")
        STEP = 128 * SB
    elif p.order == "chunk":
        e(f"  s_mul_i32 s21, s46, {SB*9}")
        STEP = SB
    wrap = p.order in ("rot", "rot3")
    e("  s_lshr_b32 s38, s2, 2")
    e("  s_xor_b32 s38, s38, s46")
    e("  s_and_b32 s38, s38, 1")
    e("  s_mov_b32 s39, 0")
    e("  s_mov_b32 s40, 0")
    e("  s_mov_b32 s42, 0")
    e(f"  s_mul_i32 s25, s20, {S*TILE}")
    e(f"  s_add_u32 s25, s25, {XB}")
    e("  s_mov_b32 s26, 0xffff0000")
    e("  s_mov_b32 s7, 0x20000")
    e("  s_mov_b32 s11, 0x20000")
    e("  s_mov_b32 s15, 0x20000")
    e("  s_mov_b32 s19, 0x20000")
    e(f"  s_mov_b32 s6, {XBYTES}")
    e(f"  s_mov_b32 s10, {XBYTES}")
    e(f"  s_mov_b32 s14, {192*384}")
    e("  s_mov_b32 s18, 384")
    probe = p.numa == "probe"
    if probe:
        e("  s_and_b32 s72, s47, 3")
        e("  s_lshr_b32 s27, s47, 3")
        e("  s_lshl_b32 s27, s27, 2")
        e("  s_add_u32 s72, s72, s27")
        e("  s_lshl_b32 s72, s72, 1")
        e("  s_and_b32 s27, s2, 1")
        e("  s_add_u32 s72, s72, s27")
        e("  s_and_b32 s27, s2, 0x26")
        e("  s_or_b32 s27, s27, s20")
        e("  s_cmp_lg_u32 s27, 0")
        e(f"  s_cselect_b32 s72, {NG}, s72")

    def rowmap(src, dst):
        e(f"  v_add_u32 v6, 43, v{src}")
        e(f"  v_add_u32 v7, 22, v{src}")
        e("  v_lshrrev_b32 v6, 6, v6")
        e("  v_lshrrev_b32 v7, 6, v7")
        e(f"  v_mad_u32_u24 v6, v6, 22, v{src}")
        e(f"  v_mad_u32_u24 v{dst}, v7, 21, v6")

    def dma_tables():
        e("  s_movk_i32 s27, 2731")
        e("  s_lshl_b32 s45, s20, 4                  ; 16 w")
        for i in range(6):
            if i:
                e(f"  v_add_u32 v4, {64*i}, v0")
                q = 4
            else:
                q = 0
            e(f"  v_mul_u32_u24 v5, s27, v{q}")
            e("  v_lshrrev_b32 v8, 16, v5               ; m")
            e("  v_bfe_u32 v5, v5, 17, 3                ; (m>>1)&7")
            e("  v_mul_u32_u24 v9, 24, v8")
            e(f"  v_sub_u32 v9, v{q}, v9")
            e("  v_xor_b32 v9, v9, v5")
            e(f"  v_lshlrev_b32 v{16+i}, 4, v9")
            e("  v_add_u32 v8, s45, v8")
            rowmap(8, 10 + i)

    def other_tables():
        e("  s_lshl_b32 s45, s20, 4")
        for r in range(4):
            e(f"  v_lshl_add_u32 v8, v3, 2, {r}")
            e("  v_add_u32 v8, s45, v8")
            rowmap(8, 22 + r)
        e("  v_lshlrev_b32 v26, 4, v2")
        e("  v_lshlrev_b32 v27, 3, v2")
        e("  v_sub_u32 v27, 0x100, v27               ; 256 - 8 j")
        e("  v_lshrrev_b32 v4, 1, v2")
        e("  v_xor_b32 v4, v4, v3                    ; g ^ f")
        e("  v_lshlrev_b32 v4, 4, v4")
        e("  v_mad_u32_u24 v28, v2, s44, v4")
        e("  v_xor_b32 v4, 64, v4")
        e("  v_mad_u32_u24 v29, v2, s44, v4")
        e("  v_lshlrev_b32 v217, 4, v0               ; lane*16")

    def side_calc(j):
        return [f"  s_add_u32 s43, s22, {SB//2}",
                "  s_lshr_b32 s43, s43, 21                 ; page",
                f"  s_lshr_b32 s45, s43, {LG}",
                "  s_lshr_b32 s45, s40, s45",
                "  s_and_b32 s43, s43, s39",
                "  s_xor_b32 s43, s43, s45",
                "  s_xor_b32 s43, s43, s38",
                "  s_and_b32 s43, s43, 1",
                "  s_mul_i32 s43, s43, 127",
                "  s_lshr_b32 s42, s42, 8",
                f"  s_lshl_b32 s45, s43, {8*S}",
                "  s_or_b32 s42, s42, s45"]

    peel = [False]

    def dma_one(i, slot, tag):
        e(f"  s_mov_b32 m0, {slot}" if i == 0 else "  s_add_u32 m0, m0, 0x400")
        e(f"  v_xor_b32 v56, s43, v{10+i}")
        e(f"  v_mad_u32_u24 v56, v56, s44, v{16+i}")
        if peel[0] and p.pwin >= 0: e(f"  s_waitcnt vmcnt({p.pwin})")
        vop(f"  buffer_load_dwordx4 v56, s[4:7], s22 offen {p.ld} lds", tag)

    def adv(reg):
        L = [f"  s_add_u32 {reg}, {reg}, {STEP}"]
        if wrap:
            L.append(f"  s_sub_u32 s45, {reg}, {XBYTES}")
            L.append(f"  s_cselect_b32 {reg}, {reg}, s45")
        return L

    CH = [59, 60, 62][:S] if p.numa != "ws" and not probe else [59, 60, 52][:S]

    def dma_items(n):
        def first():
            if n:
                for l in adv("s22"): e(l)
                e(f"  s_mov_b32 s{CH[n-1]}, s22")
                e(f"  s_add_u32 s24, s24, {TILE}")
            for l in side_calc(str(n)): e(l)
            dma_one(0, "s24", f"L{n}")
        return [first] + [(lambda i=i: dma_one(i, "s24", f"L{n}")) for i in range(1, 6)]

    if p.xfirst:
        dma_tables()
    e("  s_mov_b32 s22, s21")
    e("  s_mov_b32 s24, s25")
    e("  s_waitcnt lgkmcnt(0)")
    st("kernarg")
    e("  s_mov_b32 s12, s32")
    e("  s_and_b32 s13, s33, 0xffff")
    e("  s_mov_b32 s16, s30")
    e("  s_and_b32 s17, s31, 0xffff")
    e("  s_mov_b32 s4, s28")
    e("  s_and_b32 s5, s29, 0xffff")
    e("  s_mov_b32 s8, s34")
    e("  s_and_b32 s9, s35, 0xffff")
    e("  s_mov_b64 s[36:37], s[68:69]")
    if p.numa == "ws":
        e("  s_add_u32 s62, s70, 0x100000")
        e("  s_addc_u32 s63, s71, 0")
    if p.dyn:
        e("  s_and_b32 s27, s2, 7")
        e("  s_lshl_b32 s27, s27, 2")
        e("  s_add_u32 s27, s27, s20")
        e("  s_lshl_b32 s27, s27, 8")
        e("  s_add_u32 s27, s27, 0x200000")
        e("  s_add_u32 s50, s70, s27")
        e("  s_addc_u32 s51, s71, 0")
        e("  s_and_b32 s57, s2, 3")
        e(f"  s_add_u32 s57, s57, {p.dyn*128}")
        e(f"  s_mul_i32 s57, s57, {SB}")
        e("  s_mov_b32 s61, 0x7fffffff")
    if p.dbgwarm and p.numa in ("ws", "probe"):
        pass
    SENT = 0x7fc17fc1

    def probe_issue(rnd):
        off = 0x4000 * (5 * rnd + 1) + 0x1100 * (rnd & 1) + 0x300
        a, b = (0, 8192) if (rnd & 1) == 0 else (8192, 0)
        e(f"  s_mov_b32 s49, 0x{SENT:x}")
        e(f"  s_load_dword s48, s[62:63], {hex(off + a)}")
        e(f"  s_load_dword s49, s[62:63], {hex(off + b)}")

    def probe_eval(rnd):
        e("  s_waitcnt lgkmcnt(1)")
        e(f"  s_cmp_lg_u32 s49, 0x{SENT:x}" if (rnd & 1) == 0 else f"  s_cmp_eq_u32 s49, 0x{SENT:x}")
        e("  s_addc_u32 s74, s74, 0")
        e("  s_waitcnt lgkmcnt(0)")

    if probe:
        e(f"  s_cmp_ge_u32 s72, {NG}")
        e("  s_cbranch_scc1 L_noprobe1")
        e(f"  s_lshl_b32 s27, s72, {21+LG}")
        e("  s_add_u32 s27, s27, 0x100000")
        e("  s_add_u32 s62, s28, s27")
        e("  s_addc_u32 s63, s29, 0")
        e("  s_mov_b32 s74, 0")
        e("  s_load_dword s48, s[62:63], 0x0")
        e("L_noprobe1:")
    if p.tlb:
        e("  s_lshl_b32 s27, s47, 2")
        e("  s_add_u32 s27, s27, s20")
        e("  s_sub_u32 s27, s27, 64")
        e("  s_cmp_ge_u32 s27, 54")
        e("  s_cbranch_scc1 L_notlb")
        e("  s_cmp_ge_u32 s27, 27")
        e("  s_cselect_b64 s[50:51], s[34:35], s[28:29]")
        e("  s_cselect_b32 s45, 27, 0")
        e("  s_sub_u32 s27, s27, s45")
        e("  s_lshl_b32 s27, s27, 21")
        e("  s_add_u32 s50, s50, s27")
        e("  s_addc_u32 s51, s51, 0")
        e("  s_load_dword s52, s[50:51], 0x0")
        e("L_notlb:")
    XY = 72; Z = 124; DWF = 150; T = 158; F = 166
    pend = []
    if p.xfirst:
        for f in dma_items(0): f()
    mark = len(o)
    if not p.xfirst:
        dma_tables()
    other_tables()
    tabs = o[mark:]
    del o[mark:]
    vop(f"  buffer_load_dwordx4 v[{XY+48}:{XY+51}], v216, s[16:19], s65 offen", "dwXY")
    per = -(-len(tabs) // 15)
    for ee in range(8):
        vop(f"  buffer_load_dwordx4 v[{XY+4*ee}:{XY+4*ee+3}], v214, s[12:15], s64 offen offset:{384*ee} {p.wld}", f"XY{ee}")
        if ee:
            for l in tabs[:per]: e(l)
            del tabs[:per]
        vop(f"  buffer_load_dwordx2 v[{XY+32+2*ee}:{XY+32+2*ee+1}], v215, s[12:15], s64 offen offset:{384*ee} {p.wld}", f"XY{ee}")
        for l in tabs[:per]: e(l)
        del tabs[:per]
    assert not tabs
    if not probe: st("xyissued")
    if probe:
        e(f"  s_cmp_ge_u32 s72, {NG}")
        e("  s_cbranch_scc1 L_noprobe2")
        e("  s_waitcnt lgkmcnt(0)")
        for rnd in range(p.rounds):
            if rnd == 2:
                e("  s_cmp_lg_u32 s74, 1")
                e("  s_cbranch_scc1 L_probe_done")
            probe_issue(rnd)
            probe_eval(rnd)
        e("L_probe_done:")
        e(f"  s_cmp_ge_u32 s74, {2 if p.rounds > 1 else 1}")
        e("  s_cselect_b32 s27, 1, 0")
        e("  s_getreg_b32 s45, hwreg(HW_REG_XCC_ID, 0, 3)")
        e("  s_lshr_b32 s43, s45, 2")
        e("  s_xor_b32 s27, s27, s43                 ; h (the probed page is even)")
        e("  s_lshl_b32 s27, s27, s72")
        e("  s_lshl_b32 s45, s45, 16")
        e("  s_cmp_eq_u32 s72, 0")
        e("  s_cselect_b32 s45, s45, 0")
        e("  s_or_b32 s27, s27, s45")
        if p.dyn:
            e("  s_cmp_lg_u32 s72, 0")
            e("  s_cbranch_scc1 L_noinit")
            e("  v_and_b32 v4, 31, v0")
            e("  v_lshlrev_b32 v4, 8, v4")
            e("  v_add_u32 v4, 0x200000, v4")
            e("  v_mov_b32 v5, 0")
            e("  global_store_dword v4, v5, s[70:71] sc0 sc1")
            e("  s_waitcnt vmcnt(0)")
            e("L_noinit:")
        e("  s_or_b32 s48, s27, 0x100000")
        e("  s_atomic_add s48, s[36:37], 0x0")
        if stamp:
            e("  s_or_b32 s74, s74, 0x10000")
            e("  v_writelane_b32 v219, s74, 0")
        e("L_noprobe2:")
    if probe: st("xyissued")
    st("probe")

    if p.dbgwarm and p.numa in ("ws", "probe"):
        e("  s_load_dword s73, s[36:37], 0x80" if probe else "  s_load_dword s73, s[62:63], 0x80")

    def zload(k):
        if k == 0:
            vop(f"  buffer_load_dwordx2 v[{Z+24}:{Z+25}], v216, s[16:19], s67 offen", "dwZ")
        else:
            ee = (k - 1) >> 1
            if (k - 1) & 1 == 0:
                vop(f"  buffer_load_dwordx4 v[{Z+4*ee}:{Z+4*ee+3}], v214, s[12:15], s66 offen offset:{384*ee} {p.wld}", f"Z{ee}")
            else:
                vop(f"  buffer_load_dwordx2 v[{Z+16+2*ee}:{Z+16+2*ee+1}], v215, s[12:15], s66 offen offset:{384*ee} {p.wld}", f"Z{ee}")
    pend += [(lambda k=k: zload(k)) for k in range(9)]
    if p.otouch == 1:
        pend.insert(0, lambda: vop("  buffer_load_dword v220, v216, s[8:11], s21 offen", "touch"))
    nxt = 1 if p.xfirst else 0
    npro = min(S, 3) if p.xfirst else min(S, 2)
    for n in range(nxt, npro):
        pend += dma_items(n)

    def prep_unit(base, nep, dwbase, pre, wr, share):
        nrow = 2 * nep
        groups = 6 * nep
        k = 0
        done = 0
        for ep in range(nep):
            vwait(f"{pre}{2*ep+1}")
            if pre == "XY" and ep == 0:
                st("w0")
            e(f"  v_lshlrev_b32 v{DWF+2*ep}, 16, v{dwbase+ep}")
            e(f"  v_and_b32 v{DWF+2*ep+1}, s26, v{dwbase+ep}")
            for cp in range(6):
                if cp < 4:
                    i0 = base + 4 * (2 * ep) + cp
                    i1 = base + 4 * (2 * ep + 1) + cp
                else:
                    i0 = base + 4 * nrow + 2 * (2 * ep) + (cp - 4)
                    i1 = base + 4 * nrow + 2 * (2 * ep + 1) + (cp - 4)
                t = T + 4 * (k & 1)
                k += 1
                e(f"  v_lshlrev_b32 v{t}, 16, v{i0}")
                e(f"  v_lshlrev_b32 v{t+1}, 16, v{i1}")
                e(f"  v_and_b32 v{t+2}, s26, v{i0}")
                e(f"  v_and_b32 v{t+3}, s26, v{i1}")
                e(f"  v_pk_mul_f32 v[{t}:{t+1}], v[{t}:{t+1}], v[{DWF+2*ep}:{DWF+2*ep+1}]")
                e(f"  v_pk_mul_f32 v[{t+2}:{t+3}], v[{t+2}:{t+3}], v[{DWF+2*ep}:{DWF+2*ep+1}]")
                e(f"  v_cvt_pk_bf16_f32 v{F+4*(2*cp)+ep}, v{t}, v{t+1}")
                e(f"  v_cvt_pk_bf16_f32 v{F+4*(2*cp+1)+ep}, v{t+2}, v{t+3}")
                if ep == nep - 1:
                    wr(2 * cp); wr(2 * cp + 1)
                while done * groups < share * k and pend:
                    pend.pop(0)(); done += 1

    e(f"  s_mul_i32 s27, s20, {12*1024}")
    e("  v_add_u32 v218, s27, v217")
    if p.otouch == 2:
        pend.insert(15, lambda: vop("  buffer_load_dword v220, v216, s[8:11], s21 offen", "touch"))
    share = min(len(pend), 16 if p.otouch else 15)
    prep_unit(XY, 4, XY + 48, "XY", lambda tt: e(f"  ds_write_b128 v218, v[{F+4*tt}:{F+4*tt+3}] offset:{tt*1024}"), share)
    st("prep0")
    e("  s_lshr_b32 s27, s20, 1")
    e("  s_add_u32 s27, s27, 4")
    e(f"  s_mul_i32 s27, s27, {12*1024}")
    e("  s_and_b32 s53, s20, 1")
    e("  s_lshl_b32 s53, s53, 3")
    e("  s_add_u32 s27, s27, s53")
    e("  v_add_u32 v218, s27, v217")
    prep_unit(Z, 2, Z + 24, "Z", lambda tt: e(f"  ds_write_b64 v218, v[{F+4*tt}:{F+4*tt+1}] offset:{tt*1024}"), len(pend))
    assert not pend
    e("  v_add_u32 v30, s25, v28")
    e("  v_add_u32 v31, s25, v29")
    e("  v_add_u32 v218, 0x10000, v217")
    e(f"  s_add_u32 s41, s25, {S*TILE}")
    e("  s_waitcnt lgkmcnt(0)")
    st("prebar")
    e("  s_barrier")
    st("postbar")

    def wreg(s, t):
        f = s * 12 + t
        if f < 64:
            return f"a[{4*f}:{4*f+3}]"
        return f"v[{224+4*(f-64)}:{224+4*(f-64)+3}]"

    def wread(s, t):
        f = s * 12 + t
        if f < 64:
            e(f"  ds_read_b128 {wreg(s,t)}, v217 offset:{f*1024}")
        else:
            e(f"  ds_read_b128 {wreg(s,t)}, v218 offset:{(f-64)*1024}")

    XF = 32; SO = 62; ACC = 72; P = 120; Q = 136

    def lst(k):
        if stamp and p.lstamp:
            e("  s_memrealtime s[74:75]")
            e(f"  s_add_u32 m0, s23, {16*k}")
            e("  s_waitcnt lgkmcnt(0)")
            e("  v_writelane_b32 v144, s74, m0")

    def xread(s):
        e(f"  ds_read_b128 v[{XF+4*s}:{XF+4*s+3}], v{30+(s&1)} offset:{128*(s>>1)}")

    def mfma(t, s):
        c = "0" if s == 0 else f"v[{ACC+4*t}:{ACC+4*t+3}]"
        if p.nomfma and (t * 6 + s) % p.nomfma != 0: return
        e(f"  v_mfma_f32_16x16x32_bf16 v[{ACC+4*t}:{ACC+4*t+3}], v[{XF+4*s}:{XF+4*s+3}], {wreg(s,t)}, {c}")

    def cvt(tp, r):
        d = P + 4 * r + tp // 2 if tp < 8 else Q + 2 * r + (tp - 8) // 2
        e(f"  v_cvt_pk_bf16_f32 v{d}, v{ACC+4*tp+r}, v{ACC+4*(tp+1)+r}")

    def x2store(r, tag):
        vop(f"  buffer_store_dwordx2 v[{Q+2*r}:{Q+2*r+1}], v{SO+4+r}, s[8:11], s21 offen {p.st}", tag)

    def x4store(r, tag):
        vop(f"  buffer_store_dwordx4 v[{P+4*r}:{P+4*r+3}], v{SO+r}, s[8:11], s21 offen {p.st}", tag)

    def store_offsets(r):
        e(f"  v_xor_b32 v57, s54, v{22+r}")
        e(f"  v_mad_u32_u24 v{SO+r}, v57, s44, v26")
        e(f"  v_add_u32 v{SO+4+r}, v{SO+r}, v27")

    def store_side():
        e(f"  s_bfe_u32 s54, s42, {hex(0x70000 + 8 * side_pos[0])}")

    def next_slot_addr():
        e(f"  s_add_u32 s55, s24, {TILE}")
        e("  s_cmp_eq_u32 s55, s41")
        e("  s_cselect_b32 s55, s25, s55")
        e("  v_add_u32 v30, s55, v28")
        e("  v_add_u32 v31, s55, v29")

    usetbl = p.numa in ("probe", "ws", "guess")
    side_pos = [0]
    nT = max(p.n0 - S, 1)

    sched = [int(x) for x in p.sched.split(",")]
    assert len(sched) == NT and sum(sched) == 6 * (NT - npro)
    dseq = [(j, i) for j in range(npro, NT) for i in range(6)]
    OFF = lambda j: 48 + (j % 4)
    SID = lambda j: 52 + (j % 4)
    peel[0] = True
    uwin[0] = True
    lg = []

    def lop(fn, tag):
        fn(); lg.append(tag)

    def lwait(tag):
        idx = len(lg) - 1 - lg[::-1].index(tag)
        e(f"  s_waitcnt lgkmcnt({min(len(lg) - 1 - idx, 15)})")

    def lst2(n, k):
        if stamp and p.lstamp:
            e("  s_mov_b32 s27, m0")
            e("  s_memrealtime s[74:75]")
            e("  s_waitcnt lgkmcnt(0)")
            e(f"  v_writelane_b32 v144, s74, {16*k + n}")

    def slot_of(j):
        return (j % S) * TILE

    def dma_u(j, i):
        if i == 0:
            for l in adv("s22"): e(l)
            e(f"  s_mov_b32 s{OFF(j)}, s22")
            for l in side_calc("0")[:9]: e(l)
            e(f"  s_mov_b32 s{SID(j)}, s43")
        e(f"  s_add_u32 m0, s25, {slot_of(j) + 1024*i}")
        e(f"  v_xor_b32 v56, s{SID(j)}, v{10+i}")
        e(f"  v_mad_u32_u24 v56, v56, s44, v{16+i}")
        if p.win >= 0: e(f"  s_waitcnt vmcnt({p.win})")
        vop(f"  buffer_load_dwordx4 v56, s[4:7], s{OFF(j)} offen {p.ld} lds", f"L{j}")

    def xread_u(j, s):
        e(f"  ds_read_b128 v[{XF+4*s}:{XF+4*s+3}], v{30+(s&1)} offset:{slot_of(j) + 128*(s>>1)}")

    def store_offsets_u(j, r):
        e(f"  v_xor_b32 v57, s{SID(j)}, v{22+r}")
        e(f"  v_mad_u32_u24 v{SO+r}, v57, s44, v26")
        e(f"  v_add_u32 v{SO+4+r}, v{SO+r}, v27")

    for j in range(npro):
        e(f"  s_bfe_u32 s{SID(j)}, s42, {hex(0x70000 + 8 * (S - (npro - 1 - j)))}")
        e(f"  s_mov_b32 s{OFF(j)}, " + ("s21" if j == 0 else f"s{CH[j-1]}"))
    vwait("L0")
    for s in range(6):
        lop(lambda: xread_u(0, s), f"x0_{s}")
    for t in range(2):
        for s in range(6):
            lop(lambda: wread(s, t), f"w{t}_{s}")
    for n in range(NT):
        mine = [dseq.pop(0) for _ in range(sched[n])]
        for (j, i) in mine:
            assert j - S <= n and j > n, (n, j)
        stf = p.tst if n >= NT - max(p.tn, 1) else p.st
        stf_prev = p.tst if n - 1 >= NT - max(p.tn, 1) else p.st
        lo, hi = (p.d0, p.d1)
        if n == nT and usetbl:
            lo, hi = p.tpos, 10
        pos = {}
        for k, d in enumerate(mine):
            t = lo + (k * (hi - lo + 1)) // max(len(mine), 1) if n < NT - 2 or not p.early else 1 + k // 2
            pos.setdefault(t, []).append(d)
        lst2(n, 0)
        for t in range(12):
            if t == 11 and n + 1 < NT:
                vwait(f"L{n+1}")
                lst2(n, 3)
            for s in range(6):
                if n == 0:
                    lwait(f"w{t}_{s}")
                elif t == 0 and not (stamp and p.lstamp):
                    e(f"  s_waitcnt lgkmcnt({5-s})")
                mfma(t, s)
                if n == 0 and t + 2 < 12:
                    lop(lambda: wread(s, t + 2), f"w{t+2}_{s}")
                if n == nT and t == 0 and s == 5 and usetbl and p.numa != "guess":
                    e("  s_load_dword s72, s[36:37], 0x0" if probe else "  s_load_dword s72, s[62:63], 0x0")
                if n and t == 1 and s < 4:
                    cvt(10, s)
                if n and t == 2 and s < 4:
                    if s == 0 and p.swin >= 0: e(f"  s_waitcnt vmcnt({p.swin})")
                    vop(f"  buffer_store_dwordx2 v[{Q+2*s}:{Q+2*s+1}], v{SO+4+s}, s[8:11], s{OFF(n-1)} offen {stf_prev}", f"X2_{n-1}")
                if t == 2 and s == 5:
                    lst2(n, 1)
                if t == p.tpos and s == 0 and n == nT and usetbl:
                    e("  s_branch L_table")
                    e("L_table_done:")
                if t == 4 and 1 <= s <= 4:
                    store_offsets_u(n, s - 1)
                if t in pos and s == (0 if t > 2 else 5):
                    for (j, i) in pos[t]:
                        dma_u(j, i)
                if t == 9 and s == 5:
                    lst2(n, 2)
                if t >= 3 and (t & 1) == 1 and 1 <= s <= 4:
                    cvt(t - 3, s - 1)
                if t == 10 and 1 <= s <= 4:
                    r = s - 1
                    if s == 1 and p.swin >= 0: e(f"  s_waitcnt vmcnt({p.swin})")
                    vop(f"  buffer_store_dwordx4 v[{P+4*r}:{P+4*r+3}], v{SO+r}, s[8:11], s{OFF(n)} offen {stf}", f"X4_{n}")
                if t == 11 and n + 1 < NT:
                    xread_u(n + 1, s)
    e("  s_nop 7")
    for r in range(4):
        cvt(10, r)
    for r in range(4):
        e(f"  buffer_store_dwordx2 v[{Q+2*r}:{Q+2*r+1}], v{SO+4+r}, s[8:11], s{OFF(NT-1)} offen {p.tst}")
    specials = []
    cnts = {}
    e("  s_mov_b32 s23, 8")
    if stamp:
        st("laststore")
        e("  s_waitcnt vmcnt(0) lgkmcnt(0)")
        st("end")
        e("  s_getreg_b32 s56, hwreg(HW_REG_XCC_ID)")
        e("  s_getreg_b32 s57, hwreg(HW_REG_HW_ID)")
        e("  s_waitcnt lgkmcnt(0)")
        e("  s_lshl_b32 s58, s2, 2")
        e("  s_add_u32 s58, s58, s20")
        e("  s_lshl_b32 s58, s58, 7")
        e("  s_lshl_b32 s59, s58, 1")
        e("  s_add_u32 s59, s59, 0x40000")
        e("  v_lshl_add_u32 v1, v0, 2, s59")
        e("  global_store_dword v1, v144, s[70:71]")
        e("  v_mov_b32 v1, s58")
        e("  s_mov_b64 exec, 1")
        for k in range(len(names)):
            e(f"  v_mov_b32 v2, s{76+2*k}")
            e(f"  global_store_dword v1, v2, s[70:71] offset:{4*k}")
        for k in range(9):
            e(f"  v_readlane_b32 s59, v144, {k}")
            e("  s_nop 2")
            e("  v_mov_b32 v2, s59")
            e(f"  global_store_dword v1, v2, s[70:71] offset:{64+4*k}")
        e("  global_store_dword v1, v219, s[70:71] offset:104")
        e("  v_mov_b32 v2, s40")
        e("  global_store_dword v1, v2, s[70:71] offset:108")
        e("  v_mov_b32 v2, s23")
        e("  global_store_dword v1, v2, s[70:71] offset:112")
        e("  v_mov_b32 v2, s73")
        e("  global_store_dword v1, v2, s[70:71] offset:116")
        e("  v_mov_b32 v2, s56")
        e("  global_store_dword v1, v2, s[70:71] offset:120")
        e("  v_mov_b32 v2, s57")
        e("  global_store_dword v1, v2, s[70:71] offset:124")
    e("L_end:")
    e("  s_endpgm")
    for n, sfx in specials:
        e(f"L_w{n}:")
        e(f"  s_waitcnt vmcnt({cnts[n]})")
        e(f"  s_branch L_wdone{sfx}")
    if usetbl:
        e("L_table:")
        if probe:
            e("  s_mov_b32 s73, 0")
            e("L_table_chk:")
            e("  s_waitcnt lgkmcnt(0)")
            e("  s_cmp_lt_i32 s72, 0")
            e("  s_cbranch_scc1 L_table_done")
            e("  s_bfe_u32 s27, s72, 0x40014")
            e(f"  s_cmp_eq_u32 s27, {NG}")
            e("  s_cbranch_scc1 L_table_ok")
            e("  s_add_u32 s73, s73, 1")
            e("  s_cmp_gt_u32 s73, 8")
            e("  s_cbranch_scc1 L_table_abandon")
            e("  s_load_dword s72, s[36:37], 0x0 glc")
            e("  s_branch L_table_chk")
            e("L_table_abandon:")
            e("  s_or_b32 s74, s72, 0x80000000")
            e("  s_mov_b32 s75, s72")
            e("  s_atomic_cmpswap s[74:75], s[36:37], 0x0 glc")
            e("  s_waitcnt lgkmcnt(0)")
            e("  s_cmp_eq_u32 s74, s72")
            e("  s_cbranch_scc1 L_table_done")
            e("  s_mov_b32 s72, s74")
            e("  s_branch L_table_chk")
            e("L_table_ok:")
            e("  s_bfe_u32 s27, s72, 0x30010")
            e("  s_add_u32 s27, s27, s2")
            e("  s_bfe_u32 s38, s27, 0x10002")
            e("  s_mov_b32 s39, 1")
            e("  s_mov_b32 s40, s72")
            if p.dyn: e(f"  s_mov_b32 s61, {p.dyn-S-1}")
        elif p.numa == "ws":
            if p.dyn: e(f"  s_mov_b32 s61, {p.dyn-S-1}")
            e("  s_waitcnt lgkmcnt(0)")
            e("  s_bfe_u32 s38, s2, 0x10002")
            e("  s_mov_b32 s39, 1")
            e("  s_mov_b32 s40, s72")
        else:
            e("  s_bfe_u32 s38, s2, 0x10002")
            e("  s_mov_b32 s39, 1")
            e(f"  s_mov_b32 s40, {p.guess}")
        e("  s_branch L_table_done")
    e('.section .rodata,"a"')
    e(".p2align 6")
    e(f".amdhsa_kernel {NAME}_kernel")
    e("  .amdhsa_next_free_vgpr 512")
    e("  .amdhsa_next_free_sgpr 102")
    e("  .amdhsa_accum_offset 256")
    e("  .amdhsa_group_segment_fixed_size 0")
    e("  .amdhsa_kernarg_size 48")
    e("  .amdhsa_user_sgpr_count 2")
    e("  .amdhsa_user_sgpr_kernarg_segment_ptr 1")
    e("  .amdhsa_system_sgpr_workgroup_id_x 1")
    e("  .amdhsa_float_denorm_mode_32 3")
    e(".end_amdhsa_kernel")
    return "\n".join(o) + "\n", names, LDS, cnts


if __name__ == "__main__":
    ap = argparse.ArgumentParser()
    ap.add_argument("-o", default="/dev/stdout")
    for k, v in vars(Opt).items():
        if k.startswith("_"): continue
        if isinstance(v, bool):
            ap.add_argument("--" + k, type=lambda x: bool(int(x)), default=v)
        elif isinstance(v, int):
            ap.add_argument("--" + k, type=lambda x: int(x, 0), default=v)
        else:
            ap.add_argument("--" + k, default=v)
    a = ap.parse_args()
    txt, names, lds, cnts = gen(a)
    open(a.o, "w").write(txt)
    print(a.o, "lds", lds, "cnts", cnts, ",".join(names), file=sys.stderr)
```

```python
import sys, argparse

NAME = "standalone__depthwise_separable__vision"
HDR = """; Kernarg layout for this problem (48 bytes, ptrs only, base s[0:1]):
;   offset  40: d_ws      268435456 bytes workspace
"""
XBYTES = 147456 * 384
TILE = 6144
SB = 49152
NT = 9


class Opt:
    S = 2; order = "inter"; ld = "nt"; st = "sc0 sc1"; wld = ""; stamp = False; lstamp = False
    numa = "probe"; n0 = 3; G = 2; guess = 0; tlb = False; thr = -1; xfirst = False; rounds = 3; win = -1; swin = -1; d0 = 3; pwin = -1; tst = "sc0 sc1"; tw = -1; tn = 0; tst2 = "-"; dyn = 0; sched = "6,6,6,6,6,6,6,0,0"; d1 = 8; early = False; nomfma = 0; dbgwarm = True; tpos = 5; uw = -1; otouch = 0; diag = False


def gen(p):
    S = p.S
    XB = 73728
    LDS = XB + 4 * S * TILE
    assert LDS <= 163840
    LG = {1: 0, 2: 1, 4: 2, 8: 3}[p.G]
    NG = -(-27 // p.G)
    assert NG <= 14
    stamp = p.stamp
    o = []
    names = []
    vm = []

    def e(x):
        o.append(x)

    def st(label):
        if stamp:
            k = len(names); names.append(label)
            e(f"  s_memrealtime s[{76+2*k}:{77+2*k}]")

    uwin = [False]

    def vop(txt, tag):
        if uwin[0] and p.uw >= 0:
            e(f"  s_waitcnt vmcnt({p.uw})")
        e(txt); vm.append(tag)

    def vwait(tag):
        idx = len(vm) - 1 - vm[::-1].index(tag)
        n = len(vm) - 1 - idx
        e(f"  s_waitcnt vmcnt({min(n, 63)})")

    e(HDR + f"; @launch grid=(256,1,1) block=(256,1,1) lds={LDS}")
    e('.amdgcn_target "amdgcn-amd-amdhsa--gfx950"')
    e(".text")
    e(f".globl {NAME}_kernel")
    e(".p2align 8")
    e(f".type {NAME}_kernel,@function")
    e(f"{NAME}_kernel:")
    e("  s_cmp_ge_u32 s2, 256")
    e("  s_cbranch_scc1 L_end")
    st("start")
    if p.diag:
        e("  s_memrealtime s[96:97]")
    e("  s_load_dwordx8 s[28:35], s[0:1], 0")
    e("  s_load_dwordx4 s[68:71], s[0:1], 32     ; dbg, ws")
    e("  v_lshrrev_b32 v1, 6, v0")
    e("  v_and_b32 v0, 63, v0                    ; lane")
    e("  v_readfirstlane_b32 s20, v1")
    e("  v_and_b32 v2, 15, v0                    ; j")
    e("  v_lshrrev_b32 v3, 4, v0                 ; g")
    e("  s_movk_i32 s44, 0x180")
    e("  v_mul_u32_u24 v5, 0xc00, v3")
    e("  v_lshl_add_u32 v214, v2, 4, v5          ; pw x4 offset: 8g rows + 16 j")
    e("  v_lshl_add_u32 v215, v2, 3, v5")
    e("  v_add_u32 v215, 0x100, v215")
    e("  v_lshlrev_b32 v216, 4, v3")
    if stamp:
        e("  v_mov_b32 v219, 0")
        e("  s_mov_b32 s73, 0")
    e(f"  s_mul_i32 s64, s20, {32*384}            ; pw offset unit XY")
    e("  s_lshl_b32 s65, s20, 6                  ; dw offset unit XY")
    e("  s_lshr_b32 s27, s20, 1")
    e("  s_add_u32 s27, s27, 4")
    e("  s_and_b32 s45, s20, 1")
    e("  s_lshl_b32 s66, s27, 3")
    e("  s_add_u32 s66, s66, s45")
    e("  s_lshl_b32 s67, s66, 3")
    e(f"  s_mul_i32 s66, s66, {4*384}")
    e("  s_lshr_b32 s47, s2, 3")
    e("  s_lshl_b32 s46, s47, 2")
    e("  s_and_b32 s27, s2, 3")
    e("  s_add_u32 s46, s46, s27                 ; q")
    if p.order == "rot":
        e("  s_mul_i32 s21, s46, 57")
        e("  s_lshr_b32 s21, s21, 9")
        e("  s_mul_i32 s21, s21, 9")
        e("  s_sub_u32 s21, s46, s21                 ; q mod 9")
        e("  s_lshl_b32 s21, s21, 7")
        e("  s_add_u32 s21, s21, s46")
        e(f"  s_mul_i32 s21, s21, {SB}")
        STEP = 128 * SB
    elif p.order == "rot3":
        e("  s_mul_i32 s21, s46, 171")
        e("  s_lshr_b32 s21, s21, 9")
        e("  s_mul_i32 s21, s21, 3")
        e("  s_sub_u32 s21, s46, s21                 ; q mod 3")
        e("  s_mul_i32 s21, s21, 384")
        e("  s_add_u32 s21, s21, s46")
        e(f"  s_mul_i32 s21, s21, {SB}")
        STEP = 128 * SB
    elif p.order == "inter":
        e(f"  s_mul_i32 s21, s46, {SB}")
        STEP = 128 * SB
    elif p.order == "chunk":
        e(f"  s_mul_i32 s21, s46, {SB*9}")
        STEP = SB
    wrap = p.order in ("rot", "rot3")
    e("  s_lshr_b32 s38, s2, 2")
    e("  s_xor_b32 s38, s38, s46")
    e("  s_and_b32 s38, s38, 1")
    e("  s_mov_b32 s39, 0")
    e("  s_mov_b32 s40, 0")
    e("  s_mov_b32 s42, 0")
    e(f"  s_mul_i32 s25, s20, {S*TILE}")
    e(f"  s_add_u32 s25, s25, {XB}")
    e("  s_mov_b32 s26, 0xffff0000")
    e("  s_mov_b32 s7, 0x20000")
    e("  s_mov_b32 s11, 0x20000")
    e("  s_mov_b32 s15, 0x20000")
    e("  s_mov_b32 s19, 0x20000")
    e(f"  s_mov_b32 s6, {XBYTES}")
    e(f"  s_mov_b32 s10, {XBYTES}")
    e(f"  s_mov_b32 s14, {192*384}")
    e("  s_mov_b32 s18, 384")
    probe = p.numa == "probe"
    if probe:
        e("  s_and_b32 s72, s47, 3")
        e("  s_lshr_b32 s27, s47, 3")
        e("  s_lshl_b32 s27, s27, 2")
        e("  s_add_u32 s72, s72, s27")
        e("  s_lshl_b32 s72, s72, 1")
        e("  s_and_b32 s27, s2, 1")
        e("  s_add_u32 s72, s72, s27")
        e("  s_and_b32 s27, s2, 0x26")
        e("  s_or_b32 s27, s27, s20")
        e("  s_cmp_lg_u32 s27, 0")
        e(f"  s_cselect_b32 s72, {NG}, s72")

    def rowmap(src, dst):
        e(f"  v_add_u32 v6, 43, v{src}")
        e(f"  v_add_u32 v7, 22, v{src}")
        e("  v_lshrrev_b32 v6, 6, v6")
        e("  v_lshrrev_b32 v7, 6, v7")
        e(f"  v_mad_u32_u24 v6, v6, 22, v{src}")
        e(f"  v_mad_u32_u24 v{dst}, v7, 21, v6")

    def dma_tables():
        e("  s_movk_i32 s27, 2731")
        e("  s_lshl_b32 s45, s20, 4                  ; 16 w")
        for i in range(6):
            if i:
                e(f"  v_add_u32 v4, {64*i}, v0")
                q = 4
            else:
                q = 0
            e(f"  v_mul_u32_u24 v5, s27, v{q}")
            e("  v_lshrrev_b32 v8, 16, v5               ; m")
            e("  v_bfe_u32 v5, v5, 17, 3                ; (m>>1)&7")
            e("  v_mul_u32_u24 v9, 24, v8")
            e(f"  v_sub_u32 v9, v{q}, v9")
            e("  v_xor_b32 v9, v9, v5")
            e(f"  v_lshlrev_b32 v{16+i}, 4, v9")
            e("  v_add_u32 v8, s45, v8")
            rowmap(8, 10 + i)

    def other_tables():
        e("  s_lshl_b32 s45, s20, 4")
        for r in range(4):
            e(f"  v_lshl_add_u32 v8, v3, 2, {r}")
            e("  v_add_u32 v8, s45, v8")
            rowmap(8, 22 + r)
        e("  v_lshlrev_b32 v26, 4, v2")
        e("  v_lshlrev_b32 v27, 3, v2")
        e("  v_sub_u32 v27, 0x100, v27               ; 256 - 8 j")
        e("  v_lshrrev_b32 v4, 1, v2")
        e("  v_xor_b32 v4, v4, v3                    ; g ^ f")
        e("  v_lshlrev_b32 v4, 4, v4")
        e("  v_mad_u32_u24 v28, v2, s44, v4")
        e("  v_xor_b32 v4, 64, v4")
        e("  v_mad_u32_u24 v29, v2, s44, v4")
        e("  v_lshlrev_b32 v217, 4, v0               ; lane*16")

    def side_calc(j):
        return [f"  s_add_u32 s43, s22, {SB//2}",
                "  s_lshr_b32 s43, s43, 21                 ; page",
                f"  s_lshr_b32 s45, s43, {LG}",
                "  s_lshr_b32 s45, s40, s45",
                "  s_and_b32 s43, s43, s39",
                "  s_xor_b32 s43, s43, s45",
                "  s_xor_b32 s43, s43, s38",
                "  s_and_b32 s43, s43, 1",
                "  s_mul_i32 s43, s43, 127",
                "  s_lshr_b32 s42, s42, 8",
                f"  s_lshl_b32 s45, s43, {8*S}",
                "  s_or_b32 s42, s42, s45"]

    peel = [False]

    def dma_one(i, slot, tag):
        e(f"  s_mov_b32 m0, {slot}" if i == 0 else "  s_add_u32 m0, m0, 0x400")
        e(f"  v_xor_b32 v56, s43, v{10+i}")
        e(f"  v_mad_u32_u24 v56, v56, s44, v{16+i}")
        if peel[0] and p.pwin >= 0: e(f"  s_waitcnt vmcnt({p.pwin})")
        vop(f"  buffer_load_dwordx4 v56, s[4:7], s22 offen {p.ld} lds", tag)

    def adv(reg):
        L = [f"  s_add_u32 {reg}, {reg}, {STEP}"]
        if wrap:
            L.append(f"  s_sub_u32 s45, {reg}, {XBYTES}")
            L.append(f"  s_cselect_b32 {reg}, {reg}, s45")
        return L

    CH = [59, 60, 62][:S] if p.numa != "ws" and not probe else [59, 60, 52][:S]

    def dma_items(n):
        def first():
            if n:
                for l in adv("s22"): e(l)
                e(f"  s_mov_b32 s{CH[n-1]}, s22")
                e(f"  s_add_u32 s24, s24, {TILE}")
            for l in side_calc(str(n)): e(l)
            dma_one(0, "s24", f"L{n}")
        return [first] + [(lambda i=i: dma_one(i, "s24", f"L{n}")) for i in range(1, 6)]

    if p.xfirst:
        dma_tables()
    e("  s_mov_b32 s22, s21")
    e("  s_mov_b32 s24, s25")
    e("  s_waitcnt lgkmcnt(0)")
    st("kernarg")
    e("  s_mov_b32 s12, s32")
    e("  s_and_b32 s13, s33, 0xffff")
    e("  s_mov_b32 s16, s30")
    e("  s_and_b32 s17, s31, 0xffff")
    e("  s_mov_b32 s4, s28")
    e("  s_and_b32 s5, s29, 0xffff")
    e("  s_mov_b32 s8, s34")
    e("  s_and_b32 s9, s35, 0xffff")
    e("  s_mov_b64 s[36:37], s[68:69]")
    if p.numa == "ws":
        e("  s_add_u32 s62, s70, 0x100000")
        e("  s_addc_u32 s63, s71, 0")
    if p.dyn:
        e("  s_and_b32 s27, s2, 7")
        e("  s_lshl_b32 s27, s27, 2")
        e("  s_add_u32 s27, s27, s20")
        e("  s_lshl_b32 s27, s27, 8")
        e("  s_add_u32 s27, s27, 0x200000")
        e("  s_add_u32 s50, s70, s27")
        e("  s_addc_u32 s51, s71, 0")
        e("  s_and_b32 s57, s2, 3")
        e(f"  s_add_u32 s57, s57, {p.dyn*128}")
        e(f"  s_mul_i32 s57, s57, {SB}")
        e("  s_mov_b32 s61, 0x7fffffff")
    if p.dbgwarm and p.numa in ("ws", "probe"):
        pass
    SENT = 0x7fc17fc1

    def probe_issue(rnd):
        off = 0x4000 * (5 * rnd + 1) + 0x1100 * (rnd & 1) + 0x300
        a, b = (0, 8192) if (rnd & 1) == 0 else (8192, 0)
        e(f"  s_mov_b32 s49, 0x{SENT:x}")
        e(f"  s_load_dword s48, s[62:63], {hex(off + a)}")
        e(f"  s_load_dword s49, s[62:63], {hex(off + b)}")

    def probe_eval(rnd):
        e("  s_waitcnt lgkmcnt(1)")
        e(f"  s_cmp_lg_u32 s49, 0x{SENT:x}" if (rnd & 1) == 0 else f"  s_cmp_eq_u32 s49, 0x{SENT:x}")
        e("  s_addc_u32 s74, s74, 0")
        e("  s_waitcnt lgkmcnt(0)")

    if probe:
        e(f"  s_cmp_ge_u32 s72, {NG}")
        e("  s_cbranch_scc1 L_noprobe1")
        e(f"  s_lshl_b32 s27, s72, {21+LG}")
        e("  s_add_u32 s27, s27, 0x100000")
        e("  s_add_u32 s62, s28, s27")
        e("  s_addc_u32 s63, s29, 0")
        e("  s_mov_b32 s74, 0")
        e("  s_load_dword s48, s[62:63], 0x0")
        e("L_noprobe1:")
    if p.tlb:
        e("  s_lshl_b32 s27, s47, 2")
        e("  s_add_u32 s27, s27, s20")
        e("  s_sub_u32 s27, s27, 64")
        e("  s_cmp_ge_u32 s27, 54")
        e("  s_cbranch_scc1 L_notlb")
        e("  s_cmp_ge_u32 s27, 27")
        e("  s_cselect_b64 s[50:51], s[34:35], s[28:29]")
        e("  s_cselect_b32 s45, 27, 0")
        e("  s_sub_u32 s27, s27, s45")
        e("  s_lshl_b32 s27, s27, 21")
        e("  s_add_u32 s50, s50, s27")
        e("  s_addc_u32 s51, s51, 0")
        e("  s_load_dword s52, s[50:51], 0x0")
        e("L_notlb:")
    XY = 72; Z = 124; DWF = 150; T = 158; F = 166
    pend = []
    if p.xfirst:
        for f in dma_items(0): f()
    mark = len(o)
    if not p.xfirst:
        dma_tables()
    other_tables()
    tabs = o[mark:]
    del o[mark:]
    vop(f"  buffer_load_dwordx4 v[{XY+48}:{XY+51}], v216, s[16:19], s65 offen", "dwXY")
    per = -(-len(tabs) // 15)
    for ee in range(8):
        vop(f"  buffer_load_dwordx4 v[{XY+4*ee}:{XY+4*ee+3}], v214, s[12:15], s64 offen offset:{384*ee} {p.wld}", f"XY{ee}")
        if ee:
            for l in tabs[:per]: e(l)
            del tabs[:per]
        vop(f"  buffer_load_dwordx2 v[{XY+32+2*ee}:{XY+32+2*ee+1}], v215, s[12:15], s64 offen offset:{384*ee} {p.wld}", f"XY{ee}")
        for l in tabs[:per]: e(l)
        del tabs[:per]
    assert not tabs
    if not probe: st("xyissued")
    if probe:
        e(f"  s_cmp_ge_u32 s72, {NG}")
        e("  s_cbranch_scc1 L_noprobe2")
        e("  s_waitcnt lgkmcnt(0)")
        for rnd in range(p.rounds):
            if rnd == 2:
                e("  s_cmp_lg_u32 s74, 1")
                e("  s_cbranch_scc1 L_probe_done")
            probe_issue(rnd)
            probe_eval(rnd)
        e("L_probe_done:")
        e(f"  s_cmp_ge_u32 s74, {2 if p.rounds > 1 else 1}")
        e("  s_cselect_b32 s27, 1, 0")
        e("  s_getreg_b32 s45, hwreg(HW_REG_XCC_ID, 0, 3)")
        e("  s_lshr_b32 s43, s45, 2")
        e("  s_xor_b32 s27, s27, s43                 ; h (the probed page is even)")
        e("  s_lshl_b32 s27, s27, s72")
        e("  s_lshl_b32 s45, s45, 16")
        e("  s_cmp_eq_u32 s72, 0")
        e("  s_cselect_b32 s45, s45, 0")
        e("  s_or_b32 s27, s27, s45")
        if p.dyn:
            e("  s_cmp_lg_u32 s72, 0")
            e("  s_cbranch_scc1 L_noinit")
            e("  v_and_b32 v4, 31, v0")
            e("  v_lshlrev_b32 v4, 8, v4")
            e("  v_add_u32 v4, 0x200000, v4")
            e("  v_mov_b32 v5, 0")
            e("  global_store_dword v4, v5, s[70:71] sc0 sc1")
            e("  s_waitcnt vmcnt(0)")
            e("L_noinit:")
        e("  s_or_b32 s48, s27, 0x100000")
        e("  s_atomic_add s48, s[36:37], 0x0")
        if stamp:
            e("  s_or_b32 s74, s74, 0x10000")
            e("  v_writelane_b32 v219, s74, 0")
        e("L_noprobe2:")
    if probe: st("xyissued")
    st("probe")

    if p.dbgwarm and p.numa in ("ws", "probe"):
        e("  s_load_dword s73, s[36:37], 0x80" if probe else "  s_load_dword s73, s[62:63], 0x80")

    def zload(k):
        if k == 0:
            vop(f"  buffer_load_dwordx2 v[{Z+24}:{Z+25}], v216, s[16:19], s67 offen", "dwZ")
        else:
            ee = (k - 1) >> 1
            if (k - 1) & 1 == 0:
                vop(f"  buffer_load_dwordx4 v[{Z+4*ee}:{Z+4*ee+3}], v214, s[12:15], s66 offen offset:{384*ee} {p.wld}", f"Z{ee}")
            else:
                vop(f"  buffer_load_dwordx2 v[{Z+16+2*ee}:{Z+16+2*ee+1}], v215, s[12:15], s66 offen offset:{384*ee} {p.wld}", f"Z{ee}")
    pend += [(lambda k=k: zload(k)) for k in range(9)]
    if p.otouch == 1:
        pend.insert(0, lambda: vop("  buffer_load_dword v220, v216, s[8:11], s21 offen", "touch"))
    nxt = 1 if p.xfirst else 0
    npro = min(S, 3) if p.xfirst else min(S, 2)
    for n in range(nxt, npro):
        pend += dma_items(n)

    def prep_unit(base, nep, dwbase, pre, wr, share):
        nrow = 2 * nep
        groups = 6 * nep
        k = 0
        done = 0
        for ep in range(nep):
            vwait(f"{pre}{2*ep+1}")
            if pre == "XY" and ep == 0:
                st("w0")
            e(f"  v_lshlrev_b32 v{DWF+2*ep}, 16, v{dwbase+ep}")
            e(f"  v_and_b32 v{DWF+2*ep+1}, s26, v{dwbase+ep}")
            for cp in range(6):
                if cp < 4:
                    i0 = base + 4 * (2 * ep) + cp
                    i1 = base + 4 * (2 * ep + 1) + cp
                else:
                    i0 = base + 4 * nrow + 2 * (2 * ep) + (cp - 4)
                    i1 = base + 4 * nrow + 2 * (2 * ep + 1) + (cp - 4)
                t = T + 4 * (k & 1)
                k += 1
                e(f"  v_lshlrev_b32 v{t}, 16, v{i0}")
                e(f"  v_lshlrev_b32 v{t+1}, 16, v{i1}")
                e(f"  v_and_b32 v{t+2}, s26, v{i0}")
                e(f"  v_and_b32 v{t+3}, s26, v{i1}")
                e(f"  v_pk_mul_f32 v[{t}:{t+1}], v[{t}:{t+1}], v[{DWF+2*ep}:{DWF+2*ep+1}]")
                e(f"  v_pk_mul_f32 v[{t+2}:{t+3}], v[{t+2}:{t+3}], v[{DWF+2*ep}:{DWF+2*ep+1}]")
                e(f"  v_cvt_pk_bf16_f32 v{F+4*(2*cp)+ep}, v{t}, v{t+1}")
                e(f"  v_cvt_pk_bf16_f32 v{F+4*(2*cp+1)+ep}, v{t+2}, v{t+3}")
                if ep == nep - 1:
                    wr(2 * cp); wr(2 * cp + 1)
                while done * groups < share * k and pend:
                    pend.pop(0)(); done += 1

    e(f"  s_mul_i32 s27, s20, {12*1024}")
    e("  v_add_u32 v218, s27, v217")
    if p.otouch == 2:
        pend.insert(15, lambda: vop("  buffer_load_dword v220, v216, s[8:11], s21 offen", "touch"))
    share = min(len(pend), 16 if p.otouch else 15)
    prep_unit(XY, 4, XY + 48, "XY", lambda tt: e(f"  ds_write_b128 v218, v[{F+4*tt}:{F+4*tt+3}] offset:{tt*1024}"), share)
    st("prep0")
    e("  s_lshr_b32 s27, s20, 1")
    e("  s_add_u32 s27, s27, 4")
    e(f"  s_mul_i32 s27, s27, {12*1024}")
    e("  s_and_b32 s53, s20, 1")
    e("  s_lshl_b32 s53, s53, 3")
    e("  s_add_u32 s27, s27, s53")
    e("  v_add_u32 v218, s27, v217")
    prep_unit(Z, 2, Z + 24, "Z", lambda tt: e(f"  ds_write_b64 v218, v[{F+4*tt}:{F+4*tt+1}] offset:{tt*1024}"), len(pend))
    assert not pend
    e("  v_add_u32 v30, s25, v28")
    e("  v_add_u32 v31, s25, v29")
    e("  v_add_u32 v218, 0x10000, v217")
    e(f"  s_add_u32 s41, s25, {S*TILE}")
    e("  s_waitcnt lgkmcnt(0)")
    st("prebar")
    e("  s_barrier")
    st("postbar")

    def wreg(s, t):
        f = s * 12 + t
        if f < 64:
            return f"a[{4*f}:{4*f+3}]"
        return f"v[{224+4*(f-64)}:{224+4*(f-64)+3}]"

    def wread(s, t):
        f = s * 12 + t
        if f < 64:
            e(f"  ds_read_b128 {wreg(s,t)}, v217 offset:{f*1024}")
        else:
            e(f"  ds_read_b128 {wreg(s,t)}, v218 offset:{(f-64)*1024}")

    XF = 32; SO = 62; ACC = 72; P = 120; Q = 136

    def lst(k):
        if stamp and p.lstamp:
            e("  s_memrealtime s[74:75]")
            e(f"  s_add_u32 m0, s23, {16*k}")
            e("  s_waitcnt lgkmcnt(0)")
            e("  v_writelane_b32 v144, s74, m0")

    def xread(s):
        e(f"  ds_read_b128 v[{XF+4*s}:{XF+4*s+3}], v{30+(s&1)} offset:{128*(s>>1)}")

    def mfma(t, s):
        c = "0" if s == 0 else f"v[{ACC+4*t}:{ACC+4*t+3}]"
        if p.nomfma and (t * 6 + s) % p.nomfma != 0: return
        e(f"  v_mfma_f32_16x16x32_bf16 v[{ACC+4*t}:{ACC+4*t+3}], v[{XF+4*s}:{XF+4*s+3}], {wreg(s,t)}, {c}")

    def cvt(tp, r):
        d = P + 4 * r + tp // 2 if tp < 8 else Q + 2 * r + (tp - 8) // 2
        e(f"  v_cvt_pk_bf16_f32 v{d}, v{ACC+4*tp+r}, v{ACC+4*(tp+1)+r}")

    def x2store(r, tag):
        vop(f"  buffer_store_dwordx2 v[{Q+2*r}:{Q+2*r+1}], v{SO+4+r}, s[8:11], s21 offen {p.st}", tag)

    def x4store(r, tag):
        vop(f"  buffer_store_dwordx4 v[{P+4*r}:{P+4*r+3}], v{SO+r}, s[8:11], s21 offen {p.st}", tag)

    def store_offsets(r):
        e(f"  v_xor_b32 v57, s54, v{22+r}")
        e(f"  v_mad_u32_u24 v{SO+r}, v57, s44, v26")
        e(f"  v_add_u32 v{SO+4+r}, v{SO+r}, v27")

    def store_side():
        e(f"  s_bfe_u32 s54, s42, {hex(0x70000 + 8 * side_pos[0])}")

    def next_slot_addr():
        e(f"  s_add_u32 s55, s24, {TILE}")
        e("  s_cmp_eq_u32 s55, s41")
        e("  s_cselect_b32 s55, s25, s55")
        e("  v_add_u32 v30, s55, v28")
        e("  v_add_u32 v31, s55, v29")

    usetbl = p.numa in ("probe", "ws", "guess")
    side_pos = [0]
    nT = max(p.n0 - S, 1)

    sched = [int(x) for x in p.sched.split(",")]
    assert len(sched) == NT and sum(sched) == 6 * (NT - npro)
    dseq = [(j, i) for j in range(npro, NT) for i in range(6)]
    OFF = lambda j: 48 + (j % 4)
    SID = lambda j: 52 + (j % 4)
    peel[0] = True
    uwin[0] = True
    lg = []

    def lop(fn, tag):
        fn(); lg.append(tag)

    def lwait(tag):
        idx = len(lg) - 1 - lg[::-1].index(tag)
        e(f"  s_waitcnt lgkmcnt({min(len(lg) - 1 - idx, 15)})")

    def lst2(n, k):
        if stamp and p.lstamp:
            e("  s_mov_b32 s27, m0")
            e("  s_memrealtime s[74:75]")
            e("  s_waitcnt lgkmcnt(0)")
            e(f"  v_writelane_b32 v144, s74, {16*k + n}")

    def slot_of(j):
        return (j % S) * TILE

    def dma_u(j, i):
        if i == 0:
            for l in adv("s22"): e(l)
            e(f"  s_mov_b32 s{OFF(j)}, s22")
            for l in side_calc("0")[:9]: e(l)
            e(f"  s_mov_b32 s{SID(j)}, s43")
        e(f"  s_add_u32 m0, s25, {slot_of(j) + 1024*i}")
        e(f"  v_xor_b32 v56, s{SID(j)}, v{10+i}")
        e(f"  v_mad_u32_u24 v56, v56, s44, v{16+i}")
        if p.win >= 0: e(f"  s_waitcnt vmcnt({p.win})")
        vop(f"  buffer_load_dwordx4 v56, s[4:7], s{OFF(j)} offen {p.ld} lds", f"L{j}")

    def xread_u(j, s):
        e(f"  ds_read_b128 v[{XF+4*s}:{XF+4*s+3}], v{30+(s&1)} offset:{slot_of(j) + 128*(s>>1)}")

    def store_offsets_u(j, r):
        e(f"  v_xor_b32 v57, s{SID(j)}, v{22+r}")
        e(f"  v_mad_u32_u24 v{SO+r}, v57, s44, v26")
        e(f"  v_add_u32 v{SO+4+r}, v{SO+r}, v27")

    for j in range(npro):
        e(f"  s_bfe_u32 s{SID(j)}, s42, {hex(0x70000 + 8 * (S - (npro - 1 - j)))}")
        e(f"  s_mov_b32 s{OFF(j)}, " + ("s21" if j == 0 else f"s{CH[j-1]}"))
    vwait("L0")
    for s in range(6):
        lop(lambda: xread_u(0, s), f"x0_{s}")
    for t in range(2):
        for s in range(6):
            lop(lambda: wread(s, t), f"w{t}_{s}")
    for n in range(NT):
        mine = [dseq.pop(0) for _ in range(sched[n])]
        for (j, i) in mine:
            assert j - S <= n and j > n, (n, j)
        stf = p.tst if n >= NT - max(p.tn, 1) else p.st
        stf_prev = p.tst if n - 1 >= NT - max(p.tn, 1) else p.st
        lo, hi = (p.d0, p.d1)
        if n == nT and usetbl:
            lo, hi = p.tpos, 10
        pos = {}
        for k, d in enumerate(mine):
            t = lo + (k * (hi - lo + 1)) // max(len(mine), 1) if n < NT - 2 or not p.early else 1 + k // 2
            pos.setdefault(t, []).append(d)
        lst2(n, 0)
        for t in range(12):
            if t == 11 and n + 1 < NT:
                vwait(f"L{n+1}")
                lst2(n, 3)
            for s in range(6):
                if n == 0:
                    lwait(f"w{t}_{s}")
                elif t == 0 and not (stamp and p.lstamp):
                    e(f"  s_waitcnt lgkmcnt({5-s})")
                mfma(t, s)
                if n == 0 and t + 2 < 12:
                    lop(lambda: wread(s, t + 2), f"w{t+2}_{s}")
                if n == nT and t == 0 and s == 5 and usetbl and p.numa != "guess":
                    e("  s_load_dword s72, s[36:37], 0x0" if probe else "  s_load_dword s72, s[62:63], 0x0")
                if n and t == 1 and s < 4:
                    cvt(10, s)
                if n and t == 2 and s < 4:
                    if s == 0 and p.swin >= 0: e(f"  s_waitcnt vmcnt({p.swin})")
                    vop(f"  buffer_store_dwordx2 v[{Q+2*s}:{Q+2*s+1}], v{SO+4+s}, s[8:11], s{OFF(n-1)} offen {stf_prev}", f"X2_{n-1}")
                if t == 2 and s == 5:
                    lst2(n, 1)
                if t == p.tpos and s == 0 and n == nT and usetbl:
                    e("  s_branch L_table")
                    e("L_table_done:")
                if t == 4 and 1 <= s <= 4:
                    store_offsets_u(n, s - 1)
                if t in pos and s == (0 if t > 2 else 5):
                    for (j, i) in pos[t]:
                        dma_u(j, i)
                if t == 9 and s == 5:
                    lst2(n, 2)
                if t >= 3 and (t & 1) == 1 and 1 <= s <= 4:
                    cvt(t - 3, s - 1)
                if t == 10 and 1 <= s <= 4:
                    r = s - 1
                    if s == 1 and p.swin >= 0: e(f"  s_waitcnt vmcnt({p.swin})")
                    vop(f"  buffer_store_dwordx4 v[{P+4*r}:{P+4*r+3}], v{SO+r}, s[8:11], s{OFF(n)} offen {stf}", f"X4_{n}")
                if t == 11 and n + 1 < NT:
                    xread_u(n + 1, s)
    e("  s_nop 7")
    for r in range(4):
        cvt(10, r)
    for r in range(4):
        e(f"  buffer_store_dwordx2 v[{Q+2*r}:{Q+2*r+1}], v{SO+4+r}, s[8:11], s{OFF(NT-1)} offen {p.tst}")
    specials = []
    cnts = {}
    e("  s_mov_b32 s23, 8")
    if stamp:
        st("laststore")
        e("  s_waitcnt vmcnt(0) lgkmcnt(0)")
        st("end")
        e("  s_getreg_b32 s56, hwreg(HW_REG_XCC_ID)")
        e("  s_getreg_b32 s57, hwreg(HW_REG_HW_ID)")
        e("  s_waitcnt lgkmcnt(0)")
        e("  s_lshl_b32 s58, s2, 2")
        e("  s_add_u32 s58, s58, s20")
        e("  s_lshl_b32 s58, s58, 7")
        e("  s_lshl_b32 s59, s58, 1")
        e("  s_add_u32 s59, s59, 0x40000")
        e("  v_lshl_add_u32 v1, v0, 2, s59")
        e("  global_store_dword v1, v144, s[70:71]")
        e("  v_mov_b32 v1, s58")
        e("  s_mov_b64 exec, 1")
        for k in range(len(names)):
            e(f"  v_mov_b32 v2, s{76+2*k}")
            e(f"  global_store_dword v1, v2, s[70:71] offset:{4*k}")
        for k in range(9):
            e(f"  v_readlane_b32 s59, v144, {k}")
            e("  s_nop 2")
            e("  v_mov_b32 v2, s59")
            e(f"  global_store_dword v1, v2, s[70:71] offset:{64+4*k}")
        e("  global_store_dword v1, v219, s[70:71] offset:104")
        e("  v_mov_b32 v2, s40")
        e("  global_store_dword v1, v2, s[70:71] offset:108")
        e("  v_mov_b32 v2, s23")
        e("  global_store_dword v1, v2, s[70:71] offset:112")
        e("  v_mov_b32 v2, s73")
        e("  global_store_dword v1, v2, s[70:71] offset:116")
        e("  v_mov_b32 v2, s56")
        e("  global_store_dword v1, v2, s[70:71] offset:120")
        e("  v_mov_b32 v2, s57")
        e("  global_store_dword v1, v2, s[70:71] offset:124")
    if p.diag:
        e("  s_waitcnt vmcnt(0)")
        e("  s_memrealtime s[98:99]")
        e("  s_cmp_ge_u32 s2, 8")
        e("  s_cbranch_scc1 L_end")
        e("  s_cmp_lg_u32 s20, 0")
        e("  s_cbranch_scc1 L_end")
        e("  s_getreg_b32 s56, hwreg(HW_REG_XCC_ID, 0, 3)")
        e("  s_waitcnt lgkmcnt(0)")
        e("  s_sub_u32 s98, s98, s96")
        e("  s_and_b32 s96, s96, 0xfff")
        e("  s_lshl_b32 s98, s98, 16")
        e("  s_lshl_b32 s96, s96, 4")
        e("  s_or_b32 s98, s98, s96")
        e("  s_or_b32 s98, s98, s56")
        e("  s_lshl_b32 s58, s2, 2")
        e("  s_add_u32 s58, s58, 32")
        e("  v_mov_b32 v1, s58")
        e("  v_mov_b32 v2, s98")
        e("  global_store_dword v1, v2, s[36:37]")
    e("L_end:")
    e("  s_endpgm")
    for n, sfx in specials:
        e(f"L_w{n}:")
        e(f"  s_waitcnt vmcnt({cnts[n]})")
        e(f"  s_branch L_wdone{sfx}")
    if usetbl:
        e("L_table:")
        if probe:
            e("  s_mov_b32 s73, 0")
            e("L_table_chk:")
            e("  s_waitcnt lgkmcnt(0)")
            e("  s_cmp_lt_i32 s72, 0")
            e("  s_cbranch_scc1 L_table_done")
            e("  s_bfe_u32 s27, s72, 0x40014")
            e(f"  s_cmp_eq_u32 s27, {NG}")
            e("  s_cbranch_scc1 L_table_ok")
            e("  s_add_u32 s73, s73, 1")
            e("  s_cmp_gt_u32 s73, 8")
            e("  s_cbranch_scc1 L_table_abandon")
            e("  s_load_dword s72, s[36:37], 0x0 glc")
            e("  s_branch L_table_chk")
            e("L_table_abandon:")
            e("  s_or_b32 s74, s72, 0x80000000")
            e("  s_mov_b32 s75, s72")
            e("  s_atomic_cmpswap s[74:75], s[36:37], 0x0 glc")
            e("  s_waitcnt lgkmcnt(0)")
            e("  s_cmp_eq_u32 s74, s72")
            e("  s_cbranch_scc1 L_table_done")
            e("  s_mov_b32 s72, s74")
            e("  s_branch L_table_chk")
            e("L_table_ok:")
            if p.diag:
                e("  s_cmp_eq_u32 s73, 0")
                e("  s_cbranch_scc1 L_diag0")
                e("  s_mov_b32 s98, 1")
                e("  s_atomic_add s98, s[36:37], 0x4")
                e("  s_waitcnt lgkmcnt(0)")
                e("L_diag0:")
            e("  s_bfe_u32 s27, s72, 0x30010")
            e("  s_add_u32 s27, s27, s2")
            e("  s_bfe_u32 s38, s27, 0x10002")
            e("  s_mov_b32 s39, 1")
            e("  s_mov_b32 s40, s72")
            if p.dyn: e(f"  s_mov_b32 s61, {p.dyn-S-1}")
        elif p.numa == "ws":
            if p.dyn: e(f"  s_mov_b32 s61, {p.dyn-S-1}")
            e("  s_waitcnt lgkmcnt(0)")
            e("  s_bfe_u32 s38, s2, 0x10002")
            e("  s_mov_b32 s39, 1")
            e("  s_mov_b32 s40, s72")
        else:
            e("  s_bfe_u32 s38, s2, 0x10002")
            e("  s_mov_b32 s39, 1")
            e(f"  s_mov_b32 s40, {p.guess}")
        e("  s_branch L_table_done")
    e('.section .rodata,"a"')
    e(".p2align 6")
    e(f".amdhsa_kernel {NAME}_kernel")
    e("  .amdhsa_next_free_vgpr 512")
    e("  .amdhsa_next_free_sgpr 102")
    e("  .amdhsa_accum_offset 256")
    e("  .amdhsa_group_segment_fixed_size 0")
    e("  .amdhsa_kernarg_size 48")
    e("  .amdhsa_user_sgpr_count 2")
    e("  .amdhsa_user_sgpr_kernarg_segment_ptr 1")
    e("  .amdhsa_system_sgpr_workgroup_id_x 1")
    e("  .amdhsa_float_denorm_mode_32 3")
    e(".end_amdhsa_kernel")
    return "\n".join(o) + "\n", names, LDS, cnts


if __name__ == "__main__":
    ap = argparse.ArgumentParser()
    ap.add_argument("-o", default="/dev/stdout")
    for k, v in vars(Opt).items():
        if k.startswith("_"): continue
        if isinstance(v, bool):
            ap.add_argument("--" + k, type=lambda x: bool(int(x)), default=v)
        elif isinstance(v, int):
            ap.add_argument("--" + k, type=lambda x: int(x, 0), default=v)
        else:
            ap.add_argument("--" + k, default=v)
    a = ap.parse_args()
    txt, names, lds, cnts = gen(a)
    open(a.o, "w").write(txt)
    print(a.o, "lds", lds, "cnts", cnts, ",".join(names), file=sys.stderr)
```

```python
import sys, argparse

NAME = "standalone__depthwise_separable__vision"
HDR = """; Kernarg layout for this problem (48 bytes, ptrs only, base s[0:1]):
;   offset  40: d_ws      268435456 bytes workspace
"""
XBYTES = 147456 * 384
TILE = 6144
SB = 49152
NT = 9


class Opt:
    S = 2; order = "inter"; ld = "nt"; st = "sc0 sc1"; wld = ""; stamp = False; lstamp = False
    numa = "probe"; n0 = 3; G = 2; guess = 0; tlb = False; thr = -1; xfirst = False; rounds = 1; win = -1; swin = -1; d0 = 3; pwin = -1; tst = "sc0 sc1"; tw = -1; tn = 0; tst2 = "-"; dyn = 0; sched = "6,6,6,6,6,6,6,0,0"; d1 = 8; early = False; nomfma = 0; dbgwarm = True; tpos = 5; uw = -1; otouch = 0; diag = False; warm = False; pglc = "glc"; pairs = 1; kill = 0


def gen(p):
    S = p.S
    XB = 73728
    LDS = XB + 4 * S * TILE
    assert LDS <= 163840
    LG = {1: 0, 2: 1, 4: 2, 8: 3}[p.G]
    NG = -(-27 // p.G)
    assert NG <= 14
    stamp = p.stamp
    o = []
    names = []
    vm = []

    def e(x):
        o.append(x)

    def st(label):
        if stamp:
            k = len(names); names.append(label)
            e(f"  s_memrealtime s[{76+2*k}:{77+2*k}]")

    uwin = [False]

    def vop(txt, tag):
        if uwin[0] and p.uw >= 0:
            e(f"  s_waitcnt vmcnt({p.uw})")
        e(txt); vm.append(tag)

    def vwait(tag):
        idx = len(vm) - 1 - vm[::-1].index(tag)
        n = len(vm) - 1 - idx
        e(f"  s_waitcnt vmcnt({min(n, 63)})")

    e(HDR + f"; @launch grid=(256,1,1) block=(256,1,1) lds={LDS}")
    e('.amdgcn_target "amdgcn-amd-amdhsa--gfx950"')
    e(".text")
    e(f".globl {NAME}_kernel")
    e(".p2align 8")
    e(f".type {NAME}_kernel,@function")
    e(f"{NAME}_kernel:")
    e("  s_cmp_ge_u32 s2, 256")
    e("  s_cbranch_scc1 L_end")
    st("start")
    if p.diag:
        e("  s_memrealtime s[76:77]")
    e("  s_load_dwordx8 s[28:35], s[0:1], 0")
    e("  s_load_dwordx4 s[68:71], s[0:1], 32     ; dbg, ws")
    e("  v_lshrrev_b32 v1, 6, v0")
    e("  v_and_b32 v0, 63, v0                    ; lane")
    e("  v_readfirstlane_b32 s20, v1")
    e("  v_and_b32 v2, 15, v0                    ; j")
    e("  v_lshrrev_b32 v3, 4, v0                 ; g")
    e("  s_movk_i32 s44, 0x180")
    e("  v_mul_u32_u24 v5, 0xc00, v3")
    e("  v_lshl_add_u32 v214, v2, 4, v5          ; pw x4 offset: 8g rows + 16 j")
    e("  v_lshl_add_u32 v215, v2, 3, v5")
    e("  v_add_u32 v215, 0x100, v215")
    e("  v_lshlrev_b32 v216, 4, v3")
    if stamp:
        e("  v_mov_b32 v219, 0")
        e("  s_mov_b32 s73, 0")
    e(f"  s_mul_i32 s64, s20, {32*384}            ; pw offset unit XY")
    e("  s_lshl_b32 s65, s20, 6                  ; dw offset unit XY")
    e("  s_lshr_b32 s27, s20, 1")
    e("  s_add_u32 s27, s27, 4")
    e("  s_and_b32 s45, s20, 1")
    e("  s_lshl_b32 s66, s27, 3")
    e("  s_add_u32 s66, s66, s45")
    e("  s_lshl_b32 s67, s66, 3")
    e(f"  s_mul_i32 s66, s66, {4*384}")
    e("  s_lshr_b32 s47, s2, 3")
    e("  s_lshl_b32 s46, s47, 2")
    e("  s_and_b32 s27, s2, 3")
    e("  s_add_u32 s46, s46, s27                 ; q")
    if p.order == "rot":
        e("  s_mul_i32 s21, s46, 57")
        e("  s_lshr_b32 s21, s21, 9")
        e("  s_mul_i32 s21, s21, 9")
        e("  s_sub_u32 s21, s46, s21                 ; q mod 9")
        e("  s_lshl_b32 s21, s21, 7")
        e("  s_add_u32 s21, s21, s46")
        e(f"  s_mul_i32 s21, s21, {SB}")
        STEP = 128 * SB
    elif p.order == "rot3":
        e("  s_mul_i32 s21, s46, 171")
        e("  s_lshr_b32 s21, s21, 9")
        e("  s_mul_i32 s21, s21, 3")
        e("  s_sub_u32 s21, s46, s21                 ; q mod 3")
        e("  s_mul_i32 s21, s21, 384")
        e("  s_add_u32 s21, s21, s46")
        e(f"  s_mul_i32 s21, s21, {SB}")
        STEP = 128 * SB
    elif p.order == "inter":
        e(f"  s_mul_i32 s21, s46, {SB}")
        STEP = 128 * SB
    elif p.order == "chunk":
        e(f"  s_mul_i32 s21, s46, {SB*9}")
        STEP = SB
    wrap = p.order in ("rot", "rot3")
    e("  s_lshr_b32 s38, s2, 2")
    e("  s_xor_b32 s38, s38, s46")
    e("  s_and_b32 s38, s38, 1")
    e("  s_mov_b32 s39, 0")
    e("  s_mov_b32 s40, 0x0fffc000")
    e("  s_mov_b32 s42, 0")
    e(f"  s_mul_i32 s25, s20, {S*TILE}")
    e(f"  s_add_u32 s25, s25, {XB}")
    e("  s_mov_b32 s26, 0xffff0000")
    e("  s_mov_b32 s7, 0x20000")
    e("  s_mov_b32 s11, 0x20000")
    e("  s_mov_b32 s15, 0x20000")
    e("  s_mov_b32 s19, 0x20000")
    e(f"  s_mov_b32 s6, {XBYTES}")
    e(f"  s_mov_b32 s10, {XBYTES}")
    e(f"  s_mov_b32 s14, {192*384}")
    e("  s_mov_b32 s18, 384")
    probe = p.numa == "probe"
    if probe:
        e("  s_getreg_b32 s58, hwreg(HW_REG_XCC_ID, 0, 3)")
        e("  s_and_b32 s72, s47, 3")
        e("  s_lshr_b32 s27, s47, 3")
        e("  s_lshl_b32 s27, s27, 2")
        e("  s_add_u32 s72, s72, s27")
        e("  s_lshl_b32 s72, s72, 1")
        e("  s_add_u32 s72, s72, s58")
        e("  s_and_b32 s27, s47, 4")
        e("  s_or_b32 s27, s27, s20")
        e("  s_lshr_b32 s45, s58, 1")
        e("  s_or_b32 s27, s27, s45")
        e("  s_cmp_lg_u32 s27, 0")
        e(f"  s_cselect_b32 s72, {NG}, s72")
        if p.kill:
            e(f"  s_cmp_ge_u32 s72, {p.kill}")
            e(f"  s_cselect_b32 s72, {NG}, s72")

    def rowmap(src, dst):
        e(f"  v_add_u32 v6, 43, v{src}")
        e(f"  v_add_u32 v7, 22, v{src}")
        e("  v_lshrrev_b32 v6, 6, v6")
        e("  v_lshrrev_b32 v7, 6, v7")
        e(f"  v_mad_u32_u24 v6, v6, 22, v{src}")
        e(f"  v_mad_u32_u24 v{dst}, v7, 21, v6")

    def dma_tables():
        e("  s_movk_i32 s27, 2731")
        e("  s_lshl_b32 s45, s20, 4                  ; 16 w")
        for i in range(6):
            if i:
                e(f"  v_add_u32 v4, {64*i}, v0")
                q = 4
            else:
                q = 0
            e(f"  v_mul_u32_u24 v5, s27, v{q}")
            e("  v_lshrrev_b32 v8, 16, v5               ; m")
            e("  v_bfe_u32 v5, v5, 17, 3                ; (m>>1)&7")
            e("  v_mul_u32_u24 v9, 24, v8")
            e(f"  v_sub_u32 v9, v{q}, v9")
            e("  v_xor_b32 v9, v9, v5")
            e(f"  v_lshlrev_b32 v{16+i}, 4, v9")
            e("  v_add_u32 v8, s45, v8")
            rowmap(8, 10 + i)

    def other_tables():
        e("  s_lshl_b32 s45, s20, 4")
        for r in range(4):
            e(f"  v_lshl_add_u32 v8, v3, 2, {r}")
            e("  v_add_u32 v8, s45, v8")
            rowmap(8, 22 + r)
        e("  v_lshlrev_b32 v26, 4, v2")
        e("  v_lshlrev_b32 v27, 3, v2")
        e("  v_sub_u32 v27, 0x100, v27               ; 256 - 8 j")
        e("  v_lshrrev_b32 v4, 1, v2")
        e("  v_xor_b32 v4, v4, v3                    ; g ^ f")
        e("  v_lshlrev_b32 v4, 4, v4")
        e("  v_mad_u32_u24 v28, v2, s44, v4")
        e("  v_xor_b32 v4, 64, v4")
        e("  v_mad_u32_u24 v29, v2, s44, v4")
        e("  v_lshlrev_b32 v217, 4, v0               ; lane*16")

    def side_calc(j):
        return [f"  s_add_u32 s43, s22, {SB//2}",
                "  s_lshr_b32 s43, s43, 21                 ; page",
                f"  s_lshr_b32 s45, s43, {LG}",
                "  s_lshr_b32 s45, s40, s45",
                "  s_xor_b32 s43, s43, s45",
                "  s_xor_b32 s43, s43, s39",
                "  s_bitcmp1_b32 s45, 14",
                "  s_cselect_b32 s43, s38, s43",
                "  s_and_b32 s43, s43, 1",
                "  s_mul_i32 s43, s43, 127",
                "  s_lshr_b32 s42, s42, 8",
                f"  s_lshl_b32 s45, s43, {8*S}",
                "  s_or_b32 s42, s42, s45"]

    peel = [False]

    def dma_one(i, slot, tag):
        e(f"  s_mov_b32 m0, {slot}" if i == 0 else "  s_add_u32 m0, m0, 0x400")
        e(f"  v_xor_b32 v56, s43, v{10+i}")
        e(f"  v_mad_u32_u24 v56, v56, s44, v{16+i}")
        if peel[0] and p.pwin >= 0: e(f"  s_waitcnt vmcnt({p.pwin})")
        vop(f"  buffer_load_dwordx4 v56, s[4:7], s22 offen {p.ld} lds", tag)

    def adv(reg):
        L = [f"  s_add_u32 {reg}, {reg}, {STEP}"]
        if wrap:
            L.append(f"  s_sub_u32 s45, {reg}, {XBYTES}")
            L.append(f"  s_cselect_b32 {reg}, {reg}, s45")
        return L

    CH = [59, 60, 62][:S] if p.numa != "ws" and not probe else [59, 60, 52][:S]

    def dma_items(n):
        def first():
            if n:
                for l in adv("s22"): e(l)
                e(f"  s_mov_b32 s{CH[n-1]}, s22")
                e(f"  s_add_u32 s24, s24, {TILE}")
            for l in side_calc(str(n)): e(l)
            dma_one(0, "s24", f"L{n}")
        return [first] + [(lambda i=i: dma_one(i, "s24", f"L{n}")) for i in range(1, 6)]

    if p.xfirst:
        dma_tables()
    e("  s_mov_b32 s22, s21")
    e("  s_mov_b32 s24, s25")
    e("  s_waitcnt lgkmcnt(0)")
    st("kernarg")
    e("  s_mov_b32 s12, s32")
    e("  s_and_b32 s13, s33, 0xffff")
    e("  s_mov_b32 s16, s30")
    e("  s_and_b32 s17, s31, 0xffff")
    e("  s_mov_b32 s4, s28")
    e("  s_and_b32 s5, s29, 0xffff")
    e("  s_mov_b32 s8, s34")
    e("  s_and_b32 s9, s35, 0xffff")
    e("  s_mov_b64 s[36:37], s[68:69]")
    if p.numa == "ws":
        e("  s_add_u32 s62, s70, 0x100000")
        e("  s_addc_u32 s63, s71, 0")
    if p.dyn:
        e("  s_and_b32 s27, s2, 7")
        e("  s_lshl_b32 s27, s27, 2")
        e("  s_add_u32 s27, s27, s20")
        e("  s_lshl_b32 s27, s27, 8")
        e("  s_add_u32 s27, s27, 0x200000")
        e("  s_add_u32 s50, s70, s27")
        e("  s_addc_u32 s51, s71, 0")
        e("  s_and_b32 s57, s2, 3")
        e(f"  s_add_u32 s57, s57, {p.dyn*128}")
        e(f"  s_mul_i32 s57, s57, {SB}")
        e("  s_mov_b32 s61, 0x7fffffff")
    if p.dbgwarm and p.numa in ("ws", "probe"):
        pass
    SENT = 0x7fc17fc1

    def probe_issue(rnd):
        off = 0x4000 * (5 * rnd + 1) + 0x1100 * (rnd & 1) + 0x300
        a, b = (0, 8192) if (rnd & 1) == 0 else (8192, 0)
        e(f"  s_mov_b32 s49, 0x{SENT:x}")
        e(f"  s_load_dword s48, s[62:63], {hex(off + a)} {p.pglc}")
        e(f"  s_load_dword s49, s[62:63], {hex(off + b)} {p.pglc}")

    def probe_eval(rnd):
        e("  s_waitcnt lgkmcnt(1)")
        e(f"  s_cmp_lg_u32 s49, 0x{SENT:x}" if (rnd & 1) == 0 else f"  s_cmp_eq_u32 s49, 0x{SENT:x}")
        e("  s_addc_u32 s74, s74, 0")
        e("  s_waitcnt lgkmcnt(0)")

    if probe:
        e(f"  s_cmp_ge_u32 s72, {NG}")
        e("  s_cbranch_scc1 L_noprobe1")
        e(f"  s_lshl_b32 s27, s72, {21+LG}")
        e("  s_add_u32 s27, s27, 0x100000")
        e("  s_add_u32 s62, s28, s27")
        e("  s_addc_u32 s63, s29, 0")
        e("  s_mov_b32 s74, 0")
        if p.warm:
            e("  s_load_dword s48, s[62:63], 0x0")
        else:
            probe_issue(0)
        e("L_noprobe1:")
    if p.tlb:
        e("  s_lshl_b32 s27, s47, 2")
        e("  s_add_u32 s27, s27, s20")
        e("  s_sub_u32 s27, s27, 64")
        e("  s_cmp_ge_u32 s27, 54")
        e("  s_cbranch_scc1 L_notlb")
        e("  s_cmp_ge_u32 s27, 27")
        e("  s_cselect_b64 s[50:51], s[34:35], s[28:29]")
        e("  s_cselect_b32 s45, 27, 0")
        e("  s_sub_u32 s27, s27, s45")
        e("  s_lshl_b32 s27, s27, 21")
        e("  s_add_u32 s50, s50, s27")
        e("  s_addc_u32 s51, s51, 0")
        e("  s_load_dword s52, s[50:51], 0x0")
        e("L_notlb:")
    XY = 72; Z = 124; DWF = 150; T = 158; F = 166
    pend = []
    if p.xfirst:
        for f in dma_items(0): f()
    def probe_finish():
        e(f"  s_cmp_ge_u32 s72, {NG}")
        e("  s_cbranch_scc1 L_noprobe2")
        if p.warm:
            e("  s_waitcnt lgkmcnt(0)")
        for pr in range(p.pairs):
            if pr:
                e("  s_cmp_lg_u32 s74, 1")
                e("  s_cbranch_scc1 L_probe_done")
                e("  s_mov_b32 s74, 0")
            for rnd in (2 * pr, 2 * pr + 1):
                if rnd or p.warm:
                    probe_issue(rnd)
                probe_eval(rnd)
        e("L_probe_done:")
        e("  s_lshr_b32 s27, s74, 1")
        e("  s_and_b32 s45, s74, 1")
        e("  s_lshl_b32 s45, s45, 14")
        e("  s_or_b32 s27, s27, s45")
        e("  s_lshl_b32 s27, s27, s72")
        e("  s_sub_u32 s45, s58, s2")
        e("  s_and_b32 s45, s45, 7")
        e("  s_lshl_b32 s45, s45, 28")
        e("  s_cmp_eq_u32 s72, 0")
        e("  s_cselect_b32 s45, s45, 0")
        e("  s_or_b32 s27, s27, s45")
        e("  s_or_b32 s48, s27, 0x80000000")
        e("  s_mov_b32 s49, 0")
        e("  s_lshl_b32 s27, s72, 2")
        e("  s_add_u32 s62, s36, s27")
        e("  s_addc_u32 s63, s37, 0")
        e("  s_atomic_cmpswap s[48:49], s[62:63], 0x0")
        if stamp:
            e("  s_or_b32 s74, s74, 0x10000")
            e("  v_writelane_b32 v219, s74, 0")
        e("L_noprobe2:")

    mark = len(o)
    if not p.xfirst:
        dma_tables()
    other_tables()
    tabs = o[mark:]
    del o[mark:]
    vop(f"  buffer_load_dwordx4 v[{XY+48}:{XY+51}], v216, s[16:19], s65 offen", "dwXY")
    per = -(-len(tabs) // (15 if p.warm or not probe else 12))
    for ee in range(8):
        if probe and not p.warm and ee == 2:
            probe_finish()
        vop(f"  buffer_load_dwordx4 v[{XY+4*ee}:{XY+4*ee+3}], v214, s[12:15], s64 offen offset:{384*ee} {p.wld}", f"XY{ee}")
        if ee and (p.warm or not probe or ee >= 2):
            for l in tabs[:per]: e(l)
            del tabs[:per]
        vop(f"  buffer_load_dwordx2 v[{XY+32+2*ee}:{XY+32+2*ee+1}], v215, s[12:15], s64 offen offset:{384*ee} {p.wld}", f"XY{ee}")
        if p.warm or not probe or ee >= 2:
            for l in tabs[:per]: e(l)
            del tabs[:per]
    assert not tabs
    if not probe: st("xyissued")
    if probe and p.warm:
        probe_finish()
    if probe: st("xyissued")
    st("probe")

    if p.dbgwarm and p.numa in ("ws", "probe"):
        e("  s_load_dword s73, s[36:37], 0x80" if probe else "  s_load_dword s73, s[62:63], 0x80")

    def zload(k):
        if k == 0:
            vop(f"  buffer_load_dwordx2 v[{Z+24}:{Z+25}], v216, s[16:19], s67 offen", "dwZ")
        else:
            ee = (k - 1) >> 1
            if (k - 1) & 1 == 0:
                vop(f"  buffer_load_dwordx4 v[{Z+4*ee}:{Z+4*ee+3}], v214, s[12:15], s66 offen offset:{384*ee} {p.wld}", f"Z{ee}")
            else:
                vop(f"  buffer_load_dwordx2 v[{Z+16+2*ee}:{Z+16+2*ee+1}], v215, s[12:15], s66 offen offset:{384*ee} {p.wld}", f"Z{ee}")
    pend += [(lambda k=k: zload(k)) for k in range(9)]
    if p.otouch == 1:
        pend.insert(0, lambda: vop("  buffer_load_dword v220, v216, s[8:11], s21 offen", "touch"))
    nxt = 1 if p.xfirst else 0
    npro = min(S, 3) if p.xfirst else min(S, 2)
    for n in range(nxt, npro):
        pend += dma_items(n)

    def prep_unit(base, nep, dwbase, pre, wr, share):
        nrow = 2 * nep
        groups = 6 * nep
        k = 0
        done = 0
        for ep in range(nep):
            vwait(f"{pre}{2*ep+1}")
            if pre == "XY" and ep == 0:
                st("w0")
            e(f"  v_lshlrev_b32 v{DWF+2*ep}, 16, v{dwbase+ep}")
            e(f"  v_and_b32 v{DWF+2*ep+1}, s26, v{dwbase+ep}")
            for cp in range(6):
                if cp < 4:
                    i0 = base + 4 * (2 * ep) + cp
                    i1 = base + 4 * (2 * ep + 1) + cp
                else:
                    i0 = base + 4 * nrow + 2 * (2 * ep) + (cp - 4)
                    i1 = base + 4 * nrow + 2 * (2 * ep + 1) + (cp - 4)
                t = T + 4 * (k & 1)
                k += 1
                e(f"  v_lshlrev_b32 v{t}, 16, v{i0}")
                e(f"  v_lshlrev_b32 v{t+1}, 16, v{i1}")
                e(f"  v_and_b32 v{t+2}, s26, v{i0}")
                e(f"  v_and_b32 v{t+3}, s26, v{i1}")
                e(f"  v_pk_mul_f32 v[{t}:{t+1}], v[{t}:{t+1}], v[{DWF+2*ep}:{DWF+2*ep+1}]")
                e(f"  v_pk_mul_f32 v[{t+2}:{t+3}], v[{t+2}:{t+3}], v[{DWF+2*ep}:{DWF+2*ep+1}]")
                e(f"  v_cvt_pk_bf16_f32 v{F+4*(2*cp)+ep}, v{t}, v{t+1}")
                e(f"  v_cvt_pk_bf16_f32 v{F+4*(2*cp+1)+ep}, v{t+2}, v{t+3}")
                if ep == nep - 1:
                    wr(2 * cp); wr(2 * cp + 1)
                while done * groups < share * k and pend:
                    pend.pop(0)(); done += 1

    e(f"  s_mul_i32 s27, s20, {12*1024}")
    e("  v_add_u32 v218, s27, v217")
    if p.otouch == 2:
        pend.insert(15, lambda: vop("  buffer_load_dword v220, v216, s[8:11], s21 offen", "touch"))
    share = min(len(pend), 16 if p.otouch else 15)
    prep_unit(XY, 4, XY + 48, "XY", lambda tt: e(f"  ds_write_b128 v218, v[{F+4*tt}:{F+4*tt+3}] offset:{tt*1024}"), share)
    st("prep0")
    e("  s_lshr_b32 s27, s20, 1")
    e("  s_add_u32 s27, s27, 4")
    e(f"  s_mul_i32 s27, s27, {12*1024}")
    e("  s_and_b32 s53, s20, 1")
    e("  s_lshl_b32 s53, s53, 3")
    e("  s_add_u32 s27, s27, s53")
    e("  v_add_u32 v218, s27, v217")
    prep_unit(Z, 2, Z + 24, "Z", lambda tt: e(f"  ds_write_b64 v218, v[{F+4*tt}:{F+4*tt+1}] offset:{tt*1024}"), len(pend))
    assert not pend
    e("  v_add_u32 v30, s25, v28")
    e("  v_add_u32 v31, s25, v29")
    e("  v_add_u32 v218, 0x10000, v217")
    e(f"  s_add_u32 s41, s25, {S*TILE}")
    e("  s_waitcnt lgkmcnt(0)")
    st("prebar")
    e("  s_barrier")
    st("postbar")

    def wreg(s, t):
        f = s * 12 + t
        if f < 64:
            return f"a[{4*f}:{4*f+3}]"
        return f"v[{224+4*(f-64)}:{224+4*(f-64)+3}]"

    def wread(s, t):
        f = s * 12 + t
        if f < 64:
            e(f"  ds_read_b128 {wreg(s,t)}, v217 offset:{f*1024}")
        else:
            e(f"  ds_read_b128 {wreg(s,t)}, v218 offset:{(f-64)*1024}")

    XF = 32; SO = 62; ACC = 72; P = 120; Q = 136

    def lst(k):
        if stamp and p.lstamp:
            e("  s_memrealtime s[74:75]")
            e(f"  s_add_u32 m0, s23, {16*k}")
            e("  s_waitcnt lgkmcnt(0)")
            e("  v_writelane_b32 v144, s74, m0")

    def xread(s):
        e(f"  ds_read_b128 v[{XF+4*s}:{XF+4*s+3}], v{30+(s&1)} offset:{128*(s>>1)}")

    def mfma(t, s):
        c = "0" if s == 0 else f"v[{ACC+4*t}:{ACC+4*t+3}]"
        if p.nomfma and (t * 6 + s) % p.nomfma != 0: return
        e(f"  v_mfma_f32_16x16x32_bf16 v[{ACC+4*t}:{ACC+4*t+3}], v[{XF+4*s}:{XF+4*s+3}], {wreg(s,t)}, {c}")

    def cvt(tp, r):
        d = P + 4 * r + tp // 2 if tp < 8 else Q + 2 * r + (tp - 8) // 2
        e(f"  v_cvt_pk_bf16_f32 v{d}, v{ACC+4*tp+r}, v{ACC+4*(tp+1)+r}")

    def x2store(r, tag):
        vop(f"  buffer_store_dwordx2 v[{Q+2*r}:{Q+2*r+1}], v{SO+4+r}, s[8:11], s21 offen {p.st}", tag)

    def x4store(r, tag):
        vop(f"  buffer_store_dwordx4 v[{P+4*r}:{P+4*r+3}], v{SO+r}, s[8:11], s21 offen {p.st}", tag)

    def store_offsets(r):
        e(f"  v_xor_b32 v57, s54, v{22+r}")
        e(f"  v_mad_u32_u24 v{SO+r}, v57, s44, v26")
        e(f"  v_add_u32 v{SO+4+r}, v{SO+r}, v27")

    def store_side():
        e(f"  s_bfe_u32 s54, s42, {hex(0x70000 + 8 * side_pos[0])}")

    def next_slot_addr():
        e(f"  s_add_u32 s55, s24, {TILE}")
        e("  s_cmp_eq_u32 s55, s41")
        e("  s_cselect_b32 s55, s25, s55")
        e("  v_add_u32 v30, s55, v28")
        e("  v_add_u32 v31, s55, v29")

    usetbl = p.numa in ("probe", "ws", "guess")
    side_pos = [0]
    nT = max(p.n0 - S, 1)

    sched = [int(x) for x in p.sched.split(",")]
    assert len(sched) == NT and sum(sched) == 6 * (NT - npro)
    dseq = [(j, i) for j in range(npro, NT) for i in range(6)]
    OFF = lambda j: 48 + (j % 4)
    SID = lambda j: 52 + (j % 4)
    TB = 4 * ((76 + 2 * 10 + 3) // 4) if False else 84 if not stamp else 56
    peel[0] = True
    uwin[0] = True
    lg = []

    def lop(fn, tag):
        fn(); lg.append(tag)

    def lwait(tag):
        idx = len(lg) - 1 - lg[::-1].index(tag)
        e(f"  s_waitcnt lgkmcnt({min(len(lg) - 1 - idx, 15)})")

    def lst2(n, k):
        if stamp and p.lstamp:
            e("  s_mov_b32 s27, m0")
            e("  s_memrealtime s[74:75]")
            e("  s_waitcnt lgkmcnt(0)")
            e(f"  v_writelane_b32 v144, s74, {16*k + n}")

    def slot_of(j):
        return (j % S) * TILE

    def dma_u(j, i):
        if i == 0:
            for l in adv("s22"): e(l)
            e(f"  s_mov_b32 s{OFF(j)}, s22")
            for l in side_calc("0")[:10]: e(l)
            e(f"  s_mov_b32 s{SID(j)}, s43")
        e(f"  s_add_u32 m0, s25, {slot_of(j) + 1024*i}")
        e(f"  v_xor_b32 v56, s{SID(j)}, v{10+i}")
        e(f"  v_mad_u32_u24 v56, v56, s44, v{16+i}")
        if p.win >= 0: e(f"  s_waitcnt vmcnt({p.win})")
        vop(f"  buffer_load_dwordx4 v56, s[4:7], s{OFF(j)} offen {p.ld} lds", f"L{j}")

    def xread_u(j, s):
        e(f"  ds_read_b128 v[{XF+4*s}:{XF+4*s+3}], v{30+(s&1)} offset:{slot_of(j) + 128*(s>>1)}")

    def store_offsets_u(j, r):
        e(f"  v_xor_b32 v57, s{SID(j)}, v{22+r}")
        e(f"  v_mad_u32_u24 v{SO+r}, v57, s44, v26")
        e(f"  v_add_u32 v{SO+4+r}, v{SO+r}, v27")

    for j in range(npro):
        e(f"  s_bfe_u32 s{SID(j)}, s42, {hex(0x70000 + 8 * (S - (npro - 1 - j)))}")
        e(f"  s_mov_b32 s{OFF(j)}, " + ("s21" if j == 0 else f"s{CH[j-1]}"))
    vwait("L0")
    for s in range(6):
        lop(lambda: xread_u(0, s), f"x0_{s}")
    for t in range(2):
        for s in range(6):
            lop(lambda: wread(s, t), f"w{t}_{s}")
    for n in range(NT):
        mine = [dseq.pop(0) for _ in range(sched[n])]
        for (j, i) in mine:
            assert j - S <= n and j > n, (n, j)
        stf = p.tst if n >= NT - max(p.tn, 1) else p.st
        stf_prev = p.tst if n - 1 >= NT - max(p.tn, 1) else p.st
        lo, hi = (p.d0, p.d1)
        if n == nT and usetbl:
            lo, hi = p.tpos, 10
        pos = {}
        for k, d in enumerate(mine):
            t = lo + (k * (hi - lo + 1)) // max(len(mine), 1) if n < NT - 2 or not p.early else 1 + k // 2
            pos.setdefault(t, []).append(d)
        lst2(n, 0)
        for t in range(12):
            if t == 11 and n + 1 < NT:
                vwait(f"L{n+1}")
                lst2(n, 3)
            for s in range(6):
                if n == 0:
                    lwait(f"w{t}_{s}")
                elif t == 0 and not (stamp and p.lstamp):
                    e(f"  s_waitcnt lgkmcnt({5-s})")
                mfma(t, s)
                if n == 0 and t + 2 < 12:
                    lop(lambda: wread(s, t + 2), f"w{t+2}_{s}")
                if n == nT and t == 0 and s == 5 and usetbl and p.numa != "guess":
                    e(f"  s_load_dwordx16 s[{TB}:{TB+15}], s[36:37], 0x0" if probe else "  s_load_dword s72, s[62:63], 0x0")
                if n and t == 1 and s < 4:
                    cvt(10, s)
                if n and t == 2 and s < 4:
                    if s == 0 and p.swin >= 0: e(f"  s_waitcnt vmcnt({p.swin})")
                    vop(f"  buffer_store_dwordx2 v[{Q+2*s}:{Q+2*s+1}], v{SO+4+s}, s[8:11], s{OFF(n-1)} offen {stf_prev}", f"X2_{n-1}")
                if t == 2 and s == 5:
                    lst2(n, 1)
                if t == p.tpos and s == 0 and n == nT and usetbl:
                    e("  s_branch L_table")
                    e("L_table_done:")
                if t == 4 and 1 <= s <= 4:
                    store_offsets_u(n, s - 1)
                if t in pos and s == (0 if t > 2 else 5):
                    for (j, i) in pos[t]:
                        dma_u(j, i)
                if t == 9 and s == 5:
                    lst2(n, 2)
                if t >= 3 and (t & 1) == 1 and 1 <= s <= 4:
                    cvt(t - 3, s - 1)
                if t == 10 and 1 <= s <= 4:
                    r = s - 1
                    if s == 1 and p.swin >= 0: e(f"  s_waitcnt vmcnt({p.swin})")
                    vop(f"  buffer_store_dwordx4 v[{P+4*r}:{P+4*r+3}], v{SO+r}, s[8:11], s{OFF(n)} offen {stf}", f"X4_{n}")
                if t == 11 and n + 1 < NT:
                    xread_u(n + 1, s)
    e("  s_nop 7")
    for r in range(4):
        cvt(10, r)
    for r in range(4):
        e(f"  buffer_store_dwordx2 v[{Q+2*r}:{Q+2*r+1}], v{SO+4+r}, s[8:11], s{OFF(NT-1)} offen {p.tst}")
    specials = []
    cnts = {}
    e("  s_mov_b32 s23, 8")
    if stamp:
        st("laststore")
        e("  s_waitcnt vmcnt(0) lgkmcnt(0)")
        st("end")
        e("  s_load_dwordx2 s[70:71], s[0:1], 40")
        e("  s_getreg_b32 s56, hwreg(HW_REG_XCC_ID)")
        e("  s_getreg_b32 s57, hwreg(HW_REG_HW_ID)")
        e("  s_waitcnt lgkmcnt(0)")
        e("  s_lshl_b32 s58, s2, 2")
        e("  s_add_u32 s58, s58, s20")
        e("  s_lshl_b32 s58, s58, 7")
        e("  s_lshl_b32 s59, s58, 1")
        e("  s_add_u32 s59, s59, 0x40000")
        e("  v_lshl_add_u32 v1, v0, 2, s59")
        e("  global_store_dword v1, v144, s[70:71]")
        e("  v_mov_b32 v1, s58")
        e("  s_mov_b64 exec, 1")
        for k in range(len(names)):
            e(f"  v_mov_b32 v2, s{76+2*k}")
            e(f"  global_store_dword v1, v2, s[70:71] offset:{4*k}")
        for k in range(9):
            e(f"  v_readlane_b32 s59, v144, {k}")
            e("  s_nop 2")
            e("  v_mov_b32 v2, s59")
            e(f"  global_store_dword v1, v2, s[70:71] offset:{64+4*k}")
        e("  global_store_dword v1, v219, s[70:71] offset:104")
        e("  v_mov_b32 v2, s40")
        e("  global_store_dword v1, v2, s[70:71] offset:108")
        e("  v_mov_b32 v2, s23")
        e("  global_store_dword v1, v2, s[70:71] offset:112")
        e("  v_mov_b32 v2, s73")
        e("  global_store_dword v1, v2, s[70:71] offset:116")
        e("  v_mov_b32 v2, s56")
        e("  global_store_dword v1, v2, s[70:71] offset:120")
        e("  v_mov_b32 v2, s57")
        e("  global_store_dword v1, v2, s[70:71] offset:124")
    if p.diag:
        e("  s_waitcnt vmcnt(0)")
        e("  s_memrealtime s[78:79]")
        e("  s_cmp_ge_u32 s2, 8")
        e("  s_cbranch_scc1 L_end")
        e("  s_cmp_lg_u32 s20, 0")
        e("  s_cbranch_scc1 L_end")
        e("  s_getreg_b32 s56, hwreg(HW_REG_XCC_ID, 0, 3)")
        e("  s_waitcnt lgkmcnt(0)")
        e("  s_sub_u32 s78, s78, s76")
        e("  s_and_b32 s76, s76, 0xfff")
        e("  s_lshl_b32 s78, s78, 16")
        e("  s_lshl_b32 s76, s76, 4")
        e("  s_or_b32 s78, s78, s76")
        e("  s_or_b32 s78, s78, s56")
        e("  s_lshl_b32 s58, s2, 2")
        e("  s_add_u32 s58, s58, 0x80")
        e("  v_mov_b32 v1, s58")
        e("  v_mov_b32 v2, s78")
        e("  global_store_dword v1, v2, s[36:37]")
    e("L_end:")
    e("  s_endpgm")
    for n, sfx in specials:
        e(f"L_w{n}:")
        e(f"  s_waitcnt vmcnt({cnts[n]})")
        e(f"  s_branch L_wdone{sfx}")
    if usetbl:
        e("L_table:")
        if probe:
            e("  s_waitcnt lgkmcnt(0)")
            e(f"  s_and_b64 s[74:75], s[{TB}:{TB+1}], s[{TB+2}:{TB+3}]")
            e(f"  s_or_b64 s[72:73], s[{TB}:{TB+1}], s[{TB+2}:{TB+3}]")
            for k in range(2, NG // 2):
                e(f"  s_and_b64 s[74:75], s[74:75], s[{TB+2*k}:{TB+2*k+1}]")
                e(f"  s_or_b64 s[72:73], s[72:73], s[{TB+2*k}:{TB+2*k+1}]")
            e("  s_and_b32 s74, s74, s75")
            e("  s_or_b32 s72, s72, s73")
            e("  s_mov_b32 s73, 0")
            e("  s_cmp_lt_i32 s74, 0")
            e("  s_cbranch_scc1 L_table_ok")
            e("  v_lshlrev_b32 v4, 2, v0")
            e("  v_lshlrev_b32 v6, v0, 1")
            e("  v_lshlrev_b32 v6, 14, v6")
            e("  v_or_b32 v6, 0x80000000, v6")
            e("  v_mov_b32 v7, 0")
            e(f"  s_mov_b64 exec, {hex((1 << NG) - 1)}")
            e("L_table_poll:")
            e("  global_load_dword v5, v4, s[36:37] sc1")
            e("  s_add_u32 s73, s73, 1")
            e("  s_waitcnt vmcnt(0)")
            e("  v_cmp_eq_u32 vcc, 0, v5")
            e("  s_nop 4")
            e("  s_cbranch_vccz L_table_have")
            e("  s_cmp_lt_u32 s73, 6")
            e("  s_cbranch_scc1 L_table_poll")
            e("  global_atomic_cmpswap v5, v4, v[6:7], s[36:37] sc0")
            e("  s_waitcnt vmcnt(0)")
            e("  v_cmp_eq_u32 vcc, 0, v5")
            e("  s_nop 1")
            e("  v_cndmask_b32 v5, v5, v6, vcc")
            e("L_table_have:")
            e("  s_mov_b64 exec, -1")
            e("  s_nop 4")
            e("  v_readlane_b32 s72, v5, 0")
            for k in range(1, NG):
                e(f"  v_readlane_b32 s62, v5, {k}")
                e("  s_nop 0")
                e("  s_or_b32 s72, s72, s62")
            e("L_table_ok:")
            if p.diag:
                e("  s_cmp_eq_u32 s73, 0")
                e("  s_cbranch_scc1 L_diag0")
                e("  s_mov_b32 s74, 1")
                e("  s_atomic_add s74, s[36:37], 0x38")
                e("  s_waitcnt lgkmcnt(0)")
                e("L_diag0:")
            e("  s_bfe_u32 s27, s72, 0x3001c")
            e("  s_add_u32 s27, s27, s2")
            e("  s_bfe_u32 s39, s27, 0x10002")
            e("  s_mov_b32 s40, s72")
        elif p.numa == "ws":
            if p.dyn: e(f"  s_mov_b32 s61, {p.dyn-S-1}")
            e("  s_waitcnt lgkmcnt(0)")
            e("  s_bfe_u32 s39, s2, 0x10002")
            e("  s_mov_b32 s40, s72")
        else:
            e("  s_bfe_u32 s39, s2, 0x10002")
            e(f"  s_mov_b32 s40, {p.guess}")
        e("  s_branch L_table_done")
    e('.section .rodata,"a"')
    e(".p2align 6")
    e(f".amdhsa_kernel {NAME}_kernel")
    e("  .amdhsa_next_free_vgpr 512")
    e("  .amdhsa_next_free_sgpr 102")
    e("  .amdhsa_accum_offset 256")
    e("  .amdhsa_group_segment_fixed_size 0")
    e("  .amdhsa_kernarg_size 48")
    e("  .amdhsa_user_sgpr_count 2")
    e("  .amdhsa_user_sgpr_kernarg_segment_ptr 1")
    e("  .amdhsa_system_sgpr_workgroup_id_x 1")
    e("  .amdhsa_float_denorm_mode_32 3")
    e(".end_amdhsa_kernel")
    return "\n".join(o) + "\n", names, LDS, cnts


if __name__ == "__main__":
    ap = argparse.ArgumentParser()
    ap.add_argument("-o", default="/dev/stdout")
    for k, v in vars(Opt).items():
        if k.startswith("_"): continue
        if isinstance(v, bool):
            ap.add_argument("--" + k, type=lambda x: bool(int(x)), default=v)
        elif isinstance(v, int):
            ap.add_argument("--" + k, type=lambda x: int(x, 0), default=v)
        else:
            ap.add_argument("--" + k, default=v)
    a = ap.parse_args()
    txt, names, lds, cnts = gen(a)
    open(a.o, "w").write(txt)
    print(a.o, "lds", lds, "cnts", cnts, ",".join(names), file=sys.stderr)
```
